```python
import torch

def _softmax(x, axis=-1):
    return torch.softmax(x, dim=axis)
def _gelu(x):
    return torch.nn.functional.gelu(x, approximate="tanh")
def _silu(x):
    return torch.nn.functional.silu(x)
def _sigmoid(x):
    return torch.sigmoid(x)
def _layernorm(x, axis=-1, eps=1e-5):
    m = x.mean(dim=axis, keepdim=True)
    v = x.var(dim=axis, keepdim=True, unbiased=False)
    return (x - m) / torch.sqrt(v + eps)
def _scatter_add(tgt, idx, src, axis=0):
    return tgt.clone().index_add_(axis, idx, src)
def _segment_sum(src, seg, n):
    out = torch.zeros((n,) + src.shape[1:], dtype=src.dtype)
    return out.index_add_(0, seg, src)
def _pad(x, pw):
    flat = tuple(v for pair in reversed(pw) for v in pair)
    return torch.nn.functional.pad(x, flat)

kernel_name = 'concat_heads__gqa_block_cached__mha_block_cached__near_ridge'

def setup_inputs():

    _w = (lambda a: (lambda t: t.to(torch.bfloat16) if t.is_floating_point() else t)(torch.as_tensor(a)))
    def _A_setup():
        B, Sq, D = 16, 144, 640
        Hq, Hkv, Sk, Dh = 32, 32, 512, 192
        assert Hq % Hkv == 0, (Hq, Hkv)
        return {
            "x": _w((lambda *s: torch.randn(*s, dtype=torch.bfloat16) * 0.8)(B, Sq, D)),
            "k_cache": _w((lambda *s: torch.randn(*s, dtype=torch.bfloat16) * 0.8)(B, Hkv, Sk, Dh)),
            "v_cache": _w((lambda *s: torch.randn(*s, dtype=torch.bfloat16) * 0.05)(B, Hkv, Sk, Dh)),
            "wq": _w((lambda *s: torch.randn(*s, dtype=torch.bfloat16) * 0.8)(D, Hq * Dh) * (D ** -0.5)),
            "wo": _w((lambda *s: torch.randn(*s, dtype=torch.bfloat16) * 0.05)(Hq * Dh, D) * ((Hq * Dh) ** -0.5)),
        }
    _A_in = _A_setup()

    def _B_setup():
        B, Sq, D = 16, 144, 640
        H, Sk, Dh = 32, 512, 192
        return {
            "x": _w((lambda *s: torch.randn(*s, dtype=torch.bfloat16) * 0.8)(B, Sq, D)),
            "k_cache": _w((lambda *s: torch.randn(*s, dtype=torch.bfloat16) * 0.8)(B, H, Sk, Dh)),
            "v_cache": _w((lambda *s: torch.randn(*s, dtype=torch.bfloat16) * 0.05)(B, H, Sk, Dh)),
            "wq": _w((lambda *s: torch.randn(*s, dtype=torch.bfloat16) * 0.8)(D, H * Dh) * (D ** -0.5)),
            "wo": _w((lambda *s: torch.randn(*s, dtype=torch.bfloat16) * 0.05)(H * Dh, D) * ((H * Dh) ** -0.5)),
        }
    _B_in = _B_setup()

    return {
        "A_x": _A_in["x"],
        "A_k_cache": _A_in["k_cache"],
        "A_v_cache": _A_in["v_cache"],
        "A_wq": _A_in["wq"],
        "A_wo": _A_in["wo"],
        "B_x": _B_in["x"],
        "B_k_cache": _B_in["k_cache"],
        "B_v_cache": _B_in["v_cache"],
        "B_wq": _B_in["wq"],
        "B_wo": _B_in["wo"],
    }

def reference(A_x, A_k_cache, A_v_cache, A_wq, A_wo, B_x, B_k_cache, B_v_cache, B_wq, B_wo):
    def _A_ref(x, k_cache, v_cache, wq, wo):
        B, Sq, D = x.shape
        Hq, Dh = 32, 192
        Hkv = k_cache.shape[1]
        rep = Hq // Hkv
        q = (lambda x, *d: x.permute(*d))((x @ wq).reshape(B, Sq, Hq, Dh), 0, 2, 1, 3)
        k = (lambda x, n, axis: torch.repeat_interleave(x, n, dim=axis))(k_cache, rep, axis=1)
        v = (lambda x, n, axis: torch.repeat_interleave(x, n, dim=axis))(v_cache, rep, axis=1)
        scores = torch.einsum("bhqd,bhkd->bhqk", q, k) * (Dh ** -0.5)
        p = _softmax(scores, axis=-1)
        o = torch.einsum("bhqk,bhkd->bhqd", p, v)
        return (lambda x, *d: x.permute(*d))(o, 0, 2, 1, 3).reshape(B, Sq, Hq * Dh) @ wo

    def _B_ref(x, k_cache, v_cache, wq, wo):
        B, Sq, D = x.shape
        H, Dh = 32, 192
        q = (lambda x, *d: x.permute(*d))((x @ wq).reshape(B, Sq, H, Dh), 0, 2, 1, 3)
        scores = torch.einsum("bhqd,bhkd->bhqk", q, k_cache) * (Dh ** -0.5)
        p = _softmax(scores, axis=-1)
        o = torch.einsum("bhqk,bhkd->bhqd", p, v_cache)
        return (lambda x, *d: x.permute(*d))(o, 0, 2, 1, 3).reshape(B, Sq, H * Dh) @ wo

    a = _A_ref(A_x, A_k_cache, A_v_cache, A_wq, A_wo)
    b = _B_ref(B_x, B_k_cache, B_v_cache, B_wq, B_wo)
    return torch.concatenate([a, b], axis=-1)
```

```python
import re

_REG_RE = re.compile(r'^([vsa])(\d+)$')
_RNG_RE = re.compile(r'^([vsa])\[(\d+):(\d+)\]$')

def regs_of(op):
    if not isinstance(op, str):
        return set()
    o = op.strip()
    neg = o.startswith('-')
    if neg:
        o = o[1:]
    if o.startswith('abs(') and o.endswith(')'):
        o = o[4:-1]
    m = _REG_RE.match(o)
    if m:
        return {(m.group(1), int(m.group(2)))}
    m = _RNG_RE.match(o)
    if m:
        return {(m.group(1), i) for i in range(int(m.group(2)), int(m.group(3)) + 1)}
    if o == 'vcc':
        return {('s', 106), ('s', 107)}
    if o == 'm0':
        return {('s', 124)}
    if o == 'exec':
        return {('s', 126), ('s', 127)}
    return set()

def v(n, cnt=1):
    return f'v{n}' if cnt == 1 else f'v[{n}:{n+cnt-1}]'
def s(n, cnt=1):
    return f's{n}' if cnt == 1 else f's[{n}:{n+cnt-1}]'

TRANS = ('v_exp_f32', 'v_log_f32', 'v_rcp_f32', 'v_rsq_f32', 'v_sqrt_f32', 'v_sin_f32', 'v_cos_f32')

class Ins:
    __slots__ = ('kind', 'w', 'r', 'srcc', 'dtuple', 'states', 'op')

class Gen:
    def __init__(self):
        self.lines = []
        self.hist = []
        self.vmq = []
        self.lgq = []
        self.nlabel = 0
        self.count = 0

    def raw(self, text):
        self.lines.append(text)

    def comment(self, text):
        self.lines.append('    ; ' + text)

    def label(self, name, reset=True):
        self.lines.append(name + ':')
        if reset:
            pass

    def newlabel(self, base='L'):
        self.nlabel += 1
        return f'{base}_{self.nlabel}'

    def _classify(self, op):
        if op.startswith('v_mfma'):
            return 'mfma'
        if op.startswith('v_permlane'):
            return 'perm'
        if op in TRANS:
            return 'trans'
        if op.startswith('v_readfirstlane') or op.startswith('v_readlane'):
            return 'rdl'
        if op.startswith('v_'):
            return 'valu'
        if op.startswith('ds_'):
            return 'ds'
        if op.startswith('buffer_') or op.startswith('global_'):
            return 'vmem'
        if op.startswith('s_'):
            return 'salu'
        raise ValueError(op)

    def _need(self, p, c):
        need = 0
        valu_like = ('valu', 'trans', 'perm', 'rdl')
        pw_v = {x for x in p.w if x[0] == 'v'}
        pw_s = {x for x in p.w if x[0] == 's'}
        if p.kind in valu_like:
            if c.kind == 'mfma' and (pw_v & c.r):
                need = max(need, 2)
            if c.kind == 'perm' and (pw_v & (c.r | c.w)):
                need = max(need, 2)
            if c.kind == 'rdl' and (pw_v & c.r):
                need = max(need, 1)
            if p.kind == 'trans' and c.kind in ('valu', 'perm', 'rdl') and (pw_v & c.r):
                need = max(need, 1)
            if pw_s:
                if c.kind in valu_like + ('mfma',) and (pw_s & c.r):
                    need = max(need, 2)
                if c.kind == 'vmem' and (pw_s & c.r):
                    need = max(need, 5)
                if c.kind == 'salu' and (pw_s & c.r):
                    need = max(need, 1)
        if p.kind == 'mfma':
            if c.kind == 'mfma':
                ab = c.r - c.srcc
                if pw_v & ab:
                    need = max(need, 8)
                if pw_v & c.srcc:
                    if c.srcc != p.dtuple:
                        need = max(need, 6)
                if (pw_v & c.w) and c.dtuple != p.dtuple:
                    need = max(need, 6)
            else:
                if c.kind in valu_like + ('ds', 'vmem') and (pw_v & (c.r | c.w)):
                    need = max(need, 8)
                if c.kind in valu_like and (p.srcc & c.w):
                    need = max(need, 3)
        if p.kind == 'salu' and ('s', 124) in p.w and c.kind == 'vmem' and 'lds' in c.op:
            need = max(need, 1)
        if p.kind == 'vmem' and 'store' in p.op and ('x4' in p.op or 'x3' in p.op):
            if c.kind in valu_like + ('mfma',) and (p.r & c.w):
                need = max(need, 2)
            elif (p.r & c.w):
                need = max(need, 1)
        return need

    def I(self, op, *ops, mods='', tag=None):
        kind = self._classify(op)
        c = Ins()
        c.kind = kind
        c.op = op + ' ' + mods
        c.srcc = set()
        c.dtuple = None
        c.states = 1
        ops = list(ops)
        nodst = False
        if kind == 'vmem' and ('store' in op or 'lds' in mods.split()):
            nodst = True
        if kind == 'ds' and op.startswith('ds_write'):
            nodst = True
        if kind == 'salu' and (op.startswith('s_cmp') or op.startswith('s_waitcnt') or op.startswith('s_cbranch')
                               or op.startswith('s_branch') or op in ('s_barrier', 's_nop', 's_endpgm', 's_setprio', 's_sleep')):
            nodst = True
        if nodst:
            c.w = set()
            c.r = set().union(*[regs_of(o) for o in ops]) if ops else set()
        else:
            c.w = regs_of(ops[0])
            c.r = set().union(*[regs_of(o) for o in ops[1:]]) if len(ops) > 1 else set()
        if kind == 'perm':
            c.w = regs_of(ops[0]) | regs_of(ops[1])
            c.r = set(c.w)
        if op in ('v_fmac_f32',):
            c.r |= c.w
        if op.startswith('v_cmp') and len(ops) == 3:
            pass
        if op.startswith('v_cndmask') and len(ops) == 3:
            c.r |= regs_of('vcc')
        if kind == 'mfma':
            c.srcc = regs_of(ops[3])
            c.dtuple = frozenset(regs_of(ops[0]))
            c.srcc = frozenset(c.srcc)
        if kind == 'vmem' and 'lds' in mods.split():
            c.r |= regs_of('m0')
        if op == 's_nop':
            c.states = int(ops[0]) + 1
        states = 0
        pad = 0
        for p in reversed(self.hist):
            need = self._need(p, c)
            if need > states:
                pad = max(pad, need - states)
            states += p.states
            if states > 12:
                break
        if pad > 0:
            self._emit_nop(pad)
        text = op
        if ops:
            text += ' ' + ', '.join(str(o) for o in ops)
        if mods:
            text += ' ' + mods
        self.lines.append('    ' + text)
        self.hist.append(c)
        if len(self.hist) > 40:
            self.hist = self.hist[-40:]
        self.count += 1
        if kind == 'vmem':
            self.vmq.append(tag)
        if kind == 'ds':
            self.lgq.append(tag)
        return c

    def _emit_nop(self, n):
        while n > 0:
            k = min(n, 16)
            c = Ins(); c.kind = 'salu'; c.op = 's_nop'; c.w = set(); c.r = set(); c.srcc = set(); c.dtuple = None
            c.states = k
            self.lines.append(f'    s_nop {k-1}')
            self.hist.append(c)
            n -= k

    def pad(self, n=9):
        self._emit_nop(n)

    def vm_wait(self, *tags):
        idx = -1
        for i, t in enumerate(self.vmq):
            if t in tags:
                idx = i
        if idx < 0:
            return
        n = len(self.vmq) - 1 - idx
        n = min(n, 63)
        self.I('s_waitcnt', f'vmcnt({n})')
        self.vmq = self.vmq[len(self.vmq) - n:] if n > 0 else []

    def lg_wait(self, *tags):
        idx = -1
        for i, t in enumerate(self.lgq):
            if t in tags:
                idx = i
        if idx < 0:
            return
        n = len(self.lgq) - 1 - idx
        n = min(n, 15)
        self.I('s_waitcnt', f'lgkmcnt({n})')
        self.lgq = self.lgq[len(self.lgq) - n:] if n > 0 else []

    def lg_wait_all(self):
        if self.lgq:
            self.I('s_waitcnt', 'lgkmcnt(0)')
            self.lgq = []

    def vm_wait_n(self, n):
        self.I('s_waitcnt', f'vmcnt({n})')
        if len(self.vmq) > n:
            self.vmq = self.vmq[len(self.vmq) - n:] if n > 0 else []

    def text(self):
        return '\n'.join(self.lines) + '\n'
```

```python
import struct
from asmgen import Gen, v, s

def f32bits(x):
    return struct.unpack('<I', struct.pack('<f', x))[0]

SLOT = 12288
NSLOT = 6
Q3OFF = SLOT * NSLOT
LDS1 = Q3OFF + 6144

vKb, vVb, vDK, vDV, vDW = 0, 1, 2, 3, 4
vQ3 = 4
vM = 5
vL = 8
vA = 11
vWb = 15
vX = 5
FB = 16
S = 40
QF = 64
ACC = 112
XB = 40

sX, sK, sV, sW, sO = 4, 8, 12, 16, 20
sWv, sWb = 24, 25
sXo = 26
sWo = 29
sKn, sKe, sVn, sVe, sOOB = 30, 31, 32, 33, 34
sSl, sPs, sIt, sC, sT = 35, 36, 37, 38, 39
sT0, sT1, sT2, sT3 = 40, 41, 42, 43
sP = 44
sWs = 52
sOo = 54
sQ0 = 57
sH, sB, sPair = 58, 59, 60

def acc(dt, j):
    return ACC + (dt * 3 + j) * 4

def Sreg(kt, j):
    return S + (kt * 3 + j) * 4

def Qf(j, ks):
    return QF + (j * 6 + ks) * 4

def dma(g, vOff, srd, soff, mbase_sgpr, tag):
    for cb in range(3):
        g.I('s_add_u32', 'm0', s(mbase_sgpr), cb * 3968)
        mods = 'offen lds' if cb == 0 else f'offen offset:{cb*128} lds'
        g.I('buffer_load_dwordx4', v(vOff), s(srd, 4), s(soff), mods=mods, tag=tag)

def dstep(g, nq, breg, half_off, first, NFB=6, PD=4):
    def rd(dt):
        b = FB + (dt % NFB) * 4
        o = (dt >> 2) * 4096
        a = vA + (dt & 3)
        g.I('ds_read_b64_tr_b16', v(b, 2), v(a), mods=f'offset:{o}' if o else '', tag=('f', dt))
        g.I('ds_read_b64_tr_b16', v(b + 2, 2), v(a), mods=f'offset:{o+half_off}', tag=('f', dt))
    for dt in range(PD):
        rd(dt)
    for dt in range(12):
        if dt + PD < 12:
            rd(dt + PD)
        g.lg_wait(('f', dt))
        for j in range(nq):
            c = 0 if first else v(acc(dt, j), 4)
            g.I('v_mfma_f32_16x16x32_bf16', v(acc(dt, j), 4), v(FB + (dt % NFB) * 4, 4), v(breg[j], 4), c)

def set_addr4(g, base, slot):
    if slot == 0:
        g.I('v_mov_b32', v(vA), v(base))
    else:
        g.I('v_add_u32', v(vA), slot, v(base))
    for t in (1, 2, 3):
        g.I('v_xor_b32', v(vA + t), t * 32, v(vA))

def pack_swap(g, dst, a, b):
    g.I('v_cvt_pk_bf16_f32', v(dst), v(a), v(a + 1))
    g.I('v_cvt_pk_bf16_f32', v(dst + 1), v(a + 2), v(a + 3))
    g.I('v_cvt_pk_bf16_f32', v(dst + 2), v(b), v(b + 1))
    g.I('v_cvt_pk_bf16_f32', v(dst + 3), v(b + 2), v(b + 3))
    g.I('v_permlane32_swap_b32', v(dst), v(dst + 2))
    g.I('v_permlane32_swap_b32', v(dst + 1), v(dst + 3))
    g.I('v_permlane16_swap_b32', v(dst), v(dst + 2))
    g.I('v_permlane16_swap_b32', v(dst + 1), v(dst + 3))

def xlane(g, op, x, y):
    g.I('v_mov_b32', v(y), v(x))
    g.I('v_permlane32_swap_b32', v(x), v(y))
    g.I(op, v(x), v(x), v(y))
    g.I('v_mov_b32', v(y), v(x))
    g.I('v_permlane16_swap_b32', v(x), v(y))
    g.I(op, v(x), v(x), v(y))

def wave_body(g, nq, name):
    XD = 4
    NXB = 5
    def xbuf(t, j):
        return XB + ((t % NXB) * nq + j) * 4
    def xload(t):
        for j in range(nq):
            g.I('buffer_load_dwordx4', v(xbuf(t, j), 4), v(vX), s(sX, 4), s(sXo + j),
                mods=f'offen offset:{t*64}' if t else 'offen', tag=('x', t))
    def issue_chunk(t):
        g.I('s_add_u32', s(sT0), s(sWb), (t % NSLOT) * SLOT)
        if t < 20:
            dma(g, vDW, sW, sWo, sT0, ('d', t))
            g.I('s_add_u32', s(sWo), s(sWo), 32 * 12288)
        elif (t - 20) % 2 == 0:
            dma(g, vDK, sK, sKn, sT0, ('d', t))
            g.I('s_add_u32', s(sKn), s(sKn), SLOT)
        else:
            dma(g, vDV, sV, sVn, sT0, ('d', t))
            g.I('s_add_u32', s(sVn), s(sVn), SLOT)

    for t in range(5):
        issue_chunk(t)
        if t < XD:
            xload(t)
    for t in range(20):
        g.comment(f'qproj step {t}')
        g.vm_wait(('d', t))
        g.I('s_barrier')
        issue_chunk(t + 5)
        if t + XD < 20:
            xload(t + XD)
        set_addr4(g, vWb, (t % NSLOT) * SLOT)
        g.vm_wait(('x', t))
        dstep(g, nq, [xbuf(t, j) for j in range(nq)], 512, t == 0)
    g.I('v_lshlrev_b32', v(vQ3), 4, 'v6')
    g.I('v_add_u32', v(vQ3), Q3OFF, v(vQ3))
    for j in range(nq):
        for ks in range(6):
            if j < 2:
                pack_swap(g, Qf(j, ks), acc(2 * ks, j), acc(2 * ks + 1, j))
            else:
                d = FB + (ks % 6) * 4
                pack_swap(g, d, acc(2 * ks, j), acc(2 * ks + 1, j))
                g.I('ds_write_b128', v(vQ3), v(d, 4), mods=f'offset:{ks*1024}' if ks else '', tag='q3w')
    for r in range(12 * 3 * 4):
        if (r // 4) % 3 < nq:
            g.I('v_mov_b32', v(ACC + r), 0)
    for j in range(nq):
        g.I('v_mov_b32', v(vM + j), 0xf149f2ca)
        g.I('v_mov_b32', v(vL + j), 0)
    g.lg_wait_all()
    g.I('s_mov_b32', s(sSl), 2 * SLOT)
    g.I('s_add_u32', s(sPs), s(sWb), 1 * SLOT)
    g.I('s_mov_b32', s(sIt), 0)

    LOOP, RARE, BACK = f'{name}_loop', f'{name}_rare', f'{name}_back'
    def advance_slot():
        g.I('s_add_u32', s(sPs), s(sSl), s(sWb))
        g.I('s_add_u32', s(sSl), s(sSl), SLOT)
        g.I('s_cmp_eq_u32', s(sSl), NSLOT * SLOT)
        g.I('s_cselect_b32', s(sSl), 0, s(sSl))
    g.pad(4)
    g.label(LOOP)
    g.I('s_waitcnt', 'vmcnt(12)')
    g.I('s_barrier')
    g.I('s_cmp_lt_u32', s(sVn), s(sVe))
    g.I('s_cselect_b32', s(sT1), s(sVn), s(sOOB))
    dma(g, vDV, sV, sT1, sPs, 'dv')
    g.I('s_add_u32', s(sVn), s(sVn), SLOT)
    g.I('v_add_u32', v(vA), s(sSl), v(vKb))
    g.I('v_xor_b32', v(vA + 1), 64, v(vA))
    gsz = 12 if nq == 3 else 8
    ngb = 2 if nq == 3 else 3
    def kread(ks):
        b = FB + (ks % ngb) * gsz
        a = vA + (ks & 1)
        o = (ks >> 1) * 4096
        g.I('ds_read_b128', v(b, 4), v(a), mods=f'offset:{o}' if o else '', tag=('k', ks))
        g.I('ds_read_b128', v(b + 4, 4), v(a), mods=f'offset:{o+2048}', tag=('k', ks))
        if nq == 3:
            g.I('ds_read_b128', v(b + 8, 4), v(vQ3), mods=f'offset:{ks*1024}' if ks else '', tag=('k', ks))
    for ks in range(ngb):
        kread(ks)
    for ks in range(6):
        g.lg_wait(('k', ks))
        b = FB + (ks % ngb) * gsz
        for kt in range(2):
            for j in range(nq):
                q = Qf(j, ks) if j < 2 else b + 8
                c = 0 if ks == 0 else v(Sreg(kt, j), 4)
                g.I('v_mfma_f32_16x16x32_bf16', v(Sreg(kt, j), 4), v(b + 4 * kt, 4), v(q, 4), c)
        if ks + ngb < 6:
            kread(ks + ngb)
    advance_slot()
    T = FB
    for j in range(nq):
        a, b = Sreg(0, j), Sreg(1, j)
        g.I('v_max3_f32', v(T + j), v(a), v(a + 1), v(a + 2))
        g.I('v_max3_f32', v(T + j), v(T + j), v(a + 3), v(b))
        g.I('v_max3_f32', v(T + j), v(T + j), v(b + 1), v(b + 2))
        g.I('v_max_f32', v(T + j), v(T + j), v(b + 3))
        g.I('v_fma_f32', v(T + 3 + j), v(T + j), s(sC), f'-{v(vM + j)}')
    if nq == 3:
        g.I('v_max3_f32', v(T + 3), v(T + 3), v(T + 4), v(T + 5))
    else:
        g.I('v_max_f32', v(T + 3), v(T + 3), v(T + 4))
    g.I('v_cmp_lt_f32', 'vcc', s(sT), v(T + 3))
    g.I('s_cbranch_vccnz', RARE)
    g.label(BACK)
    for j in range(nq):
        rs = [Sreg(0, j) + i for i in range(4)] + [Sreg(1, j) + i for i in range(4)]
        for r in rs:
            g.I('v_fma_f32', v(r), v(r), s(sC), f'-{v(vM + j)}')
        for r in rs:
            g.I('v_exp_f32', v(r), v(r))
        t0 = T + 8
        g.I('v_add_f32', v(t0), v(rs[0]), v(rs[1]))
        g.I('v_add_f32', v(t0 + 1), v(rs[2]), v(rs[3]))
        g.I('v_add_f32', v(t0 + 2), v(rs[4]), v(rs[5]))
        g.I('v_add_f32', v(t0 + 3), v(rs[6]), v(rs[7]))
        g.I('v_add_f32', v(t0), v(t0), v(t0 + 1))
        g.I('v_add_f32', v(t0 + 2), v(t0 + 2), v(t0 + 3))
        g.I('v_add_f32', v(vL + j), v(vL + j), v(t0))
        g.I('v_add_f32', v(vL + j), v(vL + j), v(t0 + 2))
        g.I('v_cvt_pk_bf16_f32', v(rs[0]), v(rs[0]), v(rs[1]))
        g.I('v_cvt_pk_bf16_f32', v(rs[1]), v(rs[2]), v(rs[3]))
        g.I('v_cvt_pk_bf16_f32', v(rs[2]), v(rs[4]), v(rs[5]))
        g.I('v_cvt_pk_bf16_f32', v(rs[3]), v(rs[6]), v(rs[7]))
    g.I('s_waitcnt', 'vmcnt(12)')
    g.I('s_barrier')
    g.I('s_cmp_lt_u32', s(sKn), s(sKe))
    g.I('s_cselect_b32', s(sT1), s(sKn), s(sOOB))
    dma(g, vDK, sK, sT1, sPs, 'dk')
    g.I('s_add_u32', s(sKn), s(sKn), SLOT)
    set_addr4(g, vVb, s(sSl))
    dstep(g, nq, [Sreg(0, j) for j in range(nq)], 2048, False)
    advance_slot()
    g.I('s_add_u32', s(sIt), s(sIt), 1)
    g.I('s_cmp_lt_u32', s(sIt), 16)
    g.I('s_cbranch_scc1', LOOP)
    vO = vA
    g.I('v_mbcnt_lo_u32_b32', v(vO + 1), -1, 0)
    g.I('v_mbcnt_hi_u32_b32', v(vO + 1), -1, v(vO + 1))
    g.I('v_and_b32', v(vO), 15, v(vO + 1))
    g.I('v_add_u32', v(vO), s(sQ0), v(vO))
    g.I('v_mul_u32_u24', v(vO), 12288, v(vO))
    g.I('v_lshrrev_b32', v(vO + 1), 4, v(vO + 1))
    g.I('v_lshl_add_u32', v(vO), v(vO + 1), 4, v(vO))
    for j in range(nq):
        xlane(g, 'v_add_f32', vL + j, T)
        g.I('v_rcp_f32', v(vL + j), v(vL + j))
    for j in range(nq):
        for i in range(6):
            for dt in (2 * i, 2 * i + 1):
                for r in range(4):
                    g.I('v_mul_f32', v(acc(dt, j) + r), v(acc(dt, j) + r), v(vL + j))
            d = FB + ((j * 6 + i) % 6) * 4
            pack_swap(g, d, acc(2 * i, j), acc(2 * i + 1, j))
            g.I('buffer_store_dwordx4', v(d, 4), v(vO), s(sO, 4), s(sOo + j),
                mods=f'offen offset:{i*64}' if i else 'offen', tag='st')
    g.I('s_endpgm')
    g.label(RARE)
    g.pad(2)
    for j in range(nq):
        xlane(g, 'v_max_f32', T + j, T + 8)
        g.I('v_mul_f32', v(T + j), s(sC), v(T + j))
        g.I('v_max_f32', v(T + j), v(T + j), v(vM + j))
        g.I('v_sub_f32', v(T + 8), v(vM + j), v(T + j))
        g.I('v_exp_f32', v(T + 8), v(T + 8))
        g.I('v_mov_b32', v(vM + j), v(T + j))
        g.I('v_mul_f32', v(vL + j), v(vL + j), v(T + 8))
        for dt in range(12):
            for r in range(4):
                g.I('v_mul_f32', v(acc(dt, j) + r), v(acc(dt, j) + r), v(T + 8))
    g.pad(2)
    g.I('s_branch', BACK)

def kernel1(g, name):
    import math
    g.raw(f'.globl {name}')
    g.raw('.p2align 8')
    g.raw(f'.type {name},@function')
    g.raw(f'{name}:')
    g.I('s_cmp_ge_u32', 's2', 1024)
    g.I('s_cbranch_scc1', f'{name}_exit')
    g.I('s_and_b32', s(sT0), 's2', 7)
    g.I('s_lshr_b32', s(sT1), 's2', 3)
    g.I('s_and_b32', s(sT2), s(sT1), 3)
    g.I('s_lshr_b32', s(sPair), s(sT1), 2)
    g.I('s_lshl_b32', s(sH), s(sT0), 2)
    g.I('s_add_u32', s(sH), s(sH), s(sT2))
    g.I('s_and_b32', s(sB), s(sPair), 15)
    g.I('s_lshr_b32', s(sT3), s(sPair), 4)
    g.I('s_mul_i32', s(sT3), s(sT3), 40)
    g.I('s_add_u32', s(sT0), 's0', s(sT3))
    g.I('s_addc_u32', s(sT1), 's1', 0)
    g.I('s_load_dwordx8', s(sP, 8), s(sT0, 2), 0)
    g.I('s_load_dwordx2', s(sWs, 2), 's[0:1]', 96)
    g.I('v_lshrrev_b32', 'v6', 6, 'v0')
    g.I('v_readfirstlane_b32', s(sWv), 'v6')
    g.I('v_and_b32', 'v7', 63, 'v0')
    g.I('s_lshl_b32', s(sWb), s(sWv), 10)
    g.I('s_lshl_b32', s(sQ0), s(sWv), 5)
    g.I('s_add_u32', s(sQ0), s(sQ0), 16)
    g.I('s_cmp_eq_u32', s(sWv), 0)
    g.I('s_cselect_b32', s(sQ0), 0, s(sQ0))
    g.I('v_and_b32', 'v8', 15, 'v7')
    g.I('v_lshrrev_b32', 'v9', 4, 'v7')
    g.I('v_bfe_u32', 'v10', 'v7', 2, 2)
    g.I('v_and_b32', 'v11', 3, 'v7')
    g.I('v_lshrrev_b32', 'v12', 1, 'v8')
    g.I('v_xor_b32', 'v12', 'v9', 'v12')
    g.I('v_lshlrev_b32', 'v12', 4, 'v12')
    g.I('v_lshl_add_u32', v(vKb), 'v8', 7, 'v12')
    g.I('v_lshrrev_b32', 'v12', 1, 'v10')
    g.I('v_and_b32', 'v13', 1, 'v9')
    g.I('v_lshl_or_b32', 'v12', 'v13', 1, 'v12')
    g.I('v_lshlrev_b32', 'v12', 1, 'v12')
    g.I('v_lshrrev_b32', 'v13', 1, 'v11')
    g.I('v_xor_b32', 'v12', 'v12', 'v13')
    g.I('v_lshlrev_b32', 'v12', 4, 'v12')
    g.I('v_and_b32', 'v13', 1, 'v11')
    g.I('v_lshl_add_u32', 'v12', 'v13', 3, 'v12')
    g.I('v_lshl_add_u32', 'v13', 'v9', 2, 'v10')
    g.I('v_lshl_add_u32', v(vVb), 'v13', 7, 'v12')
    g.I('v_lshl_add_u32', 'v13', 'v9', 3, 'v10')
    g.I('v_lshl_add_u32', v(vWb), 'v13', 7, 'v12')
    g.I('v_add_u32', 'v6', s(sQ0), 'v8')
    g.I('v_mul_u32_u24', 'v6', 1280, 'v6')
    g.I('v_lshl_add_u32', 'v6', 'v9', 4, 'v6')
    g.I('v_lshrrev_b32', 'v12', 3, 'v7')
    g.I('s_lshl_b32', s(sT2), s(sWv), 3)
    g.I('v_add_u32', 'v12', s(sT2), 'v12')
    g.I('v_and_b32', 'v13', 7, 'v7')
    g.I('v_bfe_u32', 'v14', 'v12', 1, 3)
    g.I('v_xor_b32', 'v14', 'v14', 'v13')
    g.I('v_lshlrev_b32', 'v14', 4, 'v14')
    g.I('v_mul_u32_u24', 'v8', 384, 'v12')
    g.I('v_add_u32', v(vDK), 'v8', 'v14')
    g.I('v_bfe_u32', 'v14', 'v12', 1, 2)
    g.I('v_lshlrev_b32', 'v14', 1, 'v14')
    g.I('v_xor_b32', 'v14', 'v14', 'v13')
    g.I('v_lshlrev_b32', 'v14', 4, 'v14')
    g.I('v_add_u32', v(vDV), 'v8', 'v14')
    g.I('v_bfe_u32', 'v14', 'v12', 1, 1)
    g.I('v_bfe_u32', 'v9', 'v12', 3, 1)
    g.I('v_lshl_or_b32', 'v14', 'v9', 1, 'v14')
    g.I('v_lshlrev_b32', 'v14', 1, 'v14')
    g.I('v_xor_b32', 'v14', 'v14', 'v13')
    g.I('v_lshlrev_b32', 'v14', 4, 'v14')
    g.I('v_mul_u32_u24', 'v8', 12288, 'v12')
    g.I('v_add_u32', v(vDW), 'v8', 'v14')
    g.I('v_mov_b32', v(vX), 'v6')
    g.I('v_mov_b32', 'v6', 'v7')
    g.I('s_mov_b32', s(sC), f32bits(math.log2(math.e) / math.sqrt(192.0)))
    g.I('s_mov_b32', s(sT), f32bits(8.0))
    g.I('s_mov_b32', s(sOOB), 0x40000000)
    g.I('s_mul_i32', s(sXo), s(sB), 184320)
    g.I('s_add_u32', s(sXo + 1), s(sXo), 20480)
    g.I('s_add_u32', s(sXo + 2), s(sXo), 40960)
    g.I('s_mul_i32', s(sWo), s(sH), 384)
    g.I('s_lshl_b32', s(sT2), s(sB), 5)
    g.I('s_add_u32', s(sT2), s(sT2), s(sH))
    g.I('s_mul_i32', s(sKn), s(sT2), 196608)
    g.I('s_add_u32', s(sKe), s(sKn), 196608)
    g.I('s_mov_b32', s(sVn), s(sKn))
    g.I('s_mov_b32', s(sVe), s(sKe))
    g.I('s_mul_i32', s(sOo), s(sPair), 144 * 12288)
    g.I('s_add_u32', s(sOo), s(sOo), s(sWo))
    g.I('s_add_u32', s(sOo + 1), s(sOo), 196608)
    g.I('s_add_u32', s(sOo + 2), s(sOo), 393216)
    g.I('s_waitcnt', 'lgkmcnt(0)')
    for srd, p, n in ((sX, sP, 2949120), (sK, sP + 2, 100663296), (sV, sP + 4, 100663296),
                      (sW, sP + 6, 7864320), (sO, sWs, 56623104)):
        g.I('s_mov_b32', s(srd), s(p))
        g.I('s_and_b32', s(srd + 1), s(p + 1), 0xffff)
        g.I('s_mov_b32', s(srd + 2), n)
        g.I('s_mov_b32', s(srd + 3), 0x00020000)
    g.I('s_cmp_eq_u32', s(sWv), 0)
    g.I('s_cbranch_scc0', f'{name}_light')
    save = (list(g.hist), list(g.vmq), list(g.lgq))
    wave_body_wrap(g, 3, name + '_h')
    g.label(f'{name}_light')
    g.hist, g.vmq, g.lgq = list(save[0]), [], []
    g.pad(2)
    wave_body_wrap(g, 2, name + '_l')
    g.label(f'{name}_exit')
    g.I('s_endpgm')

def wave_body_wrap(g, nq, name):
    wave_body(g, nq, name)
```

```python
from asmgen import Gen, v, s

SLOT = 16384
NSLOT = 6
LDS2 = SLOT * NSLOT
PD = 5
BD = 4

vDW, vRb = 0, 1
vB = 2
vA = 8
FB = 16
ACC = 48
BB = 96

sO, sW, sOut = 4, 8, 12
sWv, sWb = 16, 17
sWo, sWe, sBo, sBe, sOOB = 18, 19, 20, 21, 22
sSl, sPs, sIt = 23, 24, 25
sT0, sT1, sT2, sT3 = 26, 27, 28, 29
sBlk, sRt, sNt = 30, 31, 32
sP = 36
sWs = 38
sOp = 40
sSt = 42

def acc(nt, j):
    return ACC + (nt * 3 + j) * 4

def pack_swap(g, dst, a, b):
    g.I('v_cvt_pk_bf16_f32', v(dst), v(a), v(a + 1))
    g.I('v_cvt_pk_bf16_f32', v(dst + 1), v(a + 2), v(a + 3))
    g.I('v_cvt_pk_bf16_f32', v(dst + 2), v(b), v(b + 1))
    g.I('v_cvt_pk_bf16_f32', v(dst + 3), v(b + 2), v(b + 3))
    g.I('v_permlane32_swap_b32', v(dst), v(dst + 2))
    g.I('v_permlane32_swap_b32', v(dst + 1), v(dst + 3))
    g.I('v_permlane16_swap_b32', v(dst), v(dst + 2))
    g.I('v_permlane16_swap_b32', v(dst + 1), v(dst + 3))

def dma_chunk(g, mbase):
    g.I('s_cmp_lt_u32', s(sWo), s(sWe))
    g.I('s_cselect_b32', s(sT1), s(sWo), s(sOOB))
    for i in range(4):
        g.I('s_add_u32', 'm0', s(mbase), i * 4096)
        g.I('buffer_load_dwordx4', v(vDW), s(sW, 4), s(sT1), mods='offen lds', tag='d')
        if i < 3:
            g.I('s_add_u32', s(sT1), s(sT1), 16 * 1280)
    g.I('s_add_u32', s(sWo), s(sWo), 64 * 1280)

def bload(g, buf):
    g.I('s_cmp_lt_u32', s(sBo), s(sBe))
    g.I('s_cselect_b32', s(sT2), s(sBo), s(sOOB))
    for j in range(3):
        for ks in range(2):
            g.I('buffer_load_dwordx4', v(BB + (buf * 6 + j * 2 + ks) * 4, 4), v(vB + j), s(sO, 4), s(sT2),
                mods='offen offset:64' if ks else 'offen', tag='b')
    g.I('s_add_u32', s(sBo), s(sBo), 128)

def kernel2(g, name):
    g.raw(f'.globl {name}')
    g.raw('.p2align 8')
    g.raw(f'.type {name},@function')
    g.raw(f'{name}:')
    g.hist, g.vmq, g.lgq = [], [], []
    g.I('s_cmp_ge_u32', 's2', 240)
    g.I('s_cbranch_scc1', f'{name}_exit')
    g.I('s_and_b32', s(sT0), 's2', 7)
    g.I('s_lshr_b32', s(sT1), 's2', 3)
    g.I('s_lshr_b32', s(sBlk), s(sT0), 2)
    g.I('s_mul_i32', s(sNt), s(sT1), 43)
    g.I('s_lshr_b32', s(sNt), s(sNt), 8)
    g.I('s_mul_i32', s(sT2), s(sNt), 6)
    g.I('s_sub_u32', s(sT1), s(sT1), s(sT2))
    g.I('s_and_b32', s(sT0), s(sT0), 3)
    g.I('s_mul_i32', s(sRt), s(sT0), 6)
    g.I('s_add_u32', s(sRt), s(sRt), s(sT1))
    g.I('s_mul_i32', s(sT3), s(sBlk), 40)
    g.I('s_add_u32', s(sT0), 's0', s(sT3))
    g.I('s_addc_u32', s(sT1), 's1', 0)
    g.I('s_load_dwordx2', s(sP, 2), s(sT0, 2), 32)
    g.I('s_load_dwordx2', s(sWs, 2), 's[0:1]', 96)
    g.I('s_load_dwordx2', s(sOp, 2), 's[0:1]', 80)
    g.I('v_lshrrev_b32', 'v6', 6, 'v0')
    g.I('v_readfirstlane_b32', s(sWv), 'v6')
    g.I('v_and_b32', 'v7', 63, 'v0')
    g.I('s_lshl_b32', s(sWb), s(sWv), 10)
    g.I('v_and_b32', 'v8', 15, 'v7')
    g.I('v_lshrrev_b32', 'v9', 4, 'v7')
    g.I('v_bfe_u32', 'v10', 'v7', 2, 2)
    g.I('v_and_b32', 'v11', 3, 'v7')
    g.I('v_and_b32', 'v12', 1, 'v9')
    g.I('v_lshl_or_b32', 'v12', 'v12', 2, 'v10')
    g.I('v_lshlrev_b32', 'v12', 1, 'v12')
    g.I('v_lshrrev_b32', 'v13', 1, 'v11')
    g.I('s_and_b32', s(sT2), s(sWv), 1)
    g.I('s_lshl_b32', s(sT3), s(sT2), 3)
    g.I('v_add_u32', 'v13', s(sT3), 'v13')
    g.I('v_xor_b32', 'v12', 'v12', 'v13')
    g.I('v_lshlrev_b32', 'v12', 4, 'v12')
    g.I('v_and_b32', 'v13', 1, 'v11')
    g.I('v_lshl_add_u32', 'v12', 'v13', 3, 'v12')
    g.I('v_lshl_add_u32', 'v13', 'v9', 3, 'v10')
    g.I('v_lshl_add_u32', v(vRb), 'v13', 8, 'v12')
    g.I('s_mul_i32', s(sT0), s(sRt), 96)
    g.I('s_lshr_b32', s(sT1), s(sWv), 1)
    g.I('s_mul_i32', s(sT1), s(sT1), 48)
    g.I('s_add_u32', s(sT0), s(sT0), s(sT1))
    g.I('s_mov_b32', s(sSt), s(sT0))
    g.I('v_add_u32', 'v12', s(sT0), 'v8')
    g.I('v_mul_u32_u24', 'v12', 12288, 'v12')
    g.I('v_lshl_add_u32', v(vB), 'v9', 4, 'v12')
    g.I('v_add_u32', v(vB + 1), 196608, v(vB))
    g.I('v_add_u32', v(vB + 2), 393216, v(vB))
    g.I('v_lshrrev_b32', 'v12', 4, 'v7')
    g.I('s_lshl_b32', s(sT0), s(sWv), 2)
    g.I('v_add_u32', 'v12', s(sT0), 'v12')
    g.I('v_and_b32', 'v13', 3, 'v12')
    g.I('v_bfe_u32', 'v14', 'v12', 3, 1)
    g.I('v_lshl_or_b32', 'v13', 'v14', 2, 'v13')
    g.I('v_lshlrev_b32', 'v13', 1, 'v13')
    g.I('v_xor_b32', 'v13', 'v13', 'v8')
    g.I('v_lshlrev_b32', 'v13', 4, 'v13')
    g.I('v_mul_u32_u24', 'v12', 1280, 'v12')
    g.I('v_add_u32', v(vDW), 'v12', 'v13')
    g.I('s_mov_b32', s(sOOB), 0x40000000)
    g.I('s_lshl_b32', s(sWo), s(sNt), 8)
    g.I('s_add_u32', s(sWe), s(sWo), 6144 * 1280)
    g.I('s_mul_i32', s(sBo), s(sBlk), 2304 * 12288)
    g.I('s_add_u32', s(sBe), s(sBo), 12288)
    g.I('s_waitcnt', 'lgkmcnt(0)')
    for srd, p, n in ((sO, sWs, 56623104), (sW, sP, 7864320), (sOut, sOp, 5898240)):
        g.I('s_mov_b32', s(srd), s(p))
        g.I('s_and_b32', s(srd + 1), s(p + 1), 0xffff)
        g.I('s_mov_b32', s(srd + 2), n)
        g.I('s_mov_b32', s(srd + 3), 0x00020000)
    for r in range(48):
        g.I('v_mov_b32', v(ACC + r), 0)
    for t in range(-PD, 0):
        g.I('s_add_u32', s(sT0), s(sWb), ((t + PD) % NSLOT) * SLOT)
        dma_chunk(g, sT0)
        if t + BD >= 0:
            bload(g, (t + BD) % BD)
    g.I('s_mov_b32', s(sSl), 0)
    g.I('s_add_u32', s(sPs), s(sWb), (NSLOT - 1) * SLOT)
    g.I('s_mov_b32', s(sIt), 0)
    LOOP = f'{name}_loop'
    g.pad(4)
    g.label(LOOP)
    for u in range(BD):
        g.I('s_waitcnt', f'vmcnt({10*(BD-1)})')
        g.I('s_barrier')
        dma_chunk(g, sPs)
        g.I('v_add_u32', v(vA), s(sSl), v(vRb))
        for t in (1, 2, 3):
            g.I('v_xor_b32', v(vA + t), t * 32, v(vA))
        def rd(n):
            ks, nt = n >> 2, n & 3
            b = FB + n * 4
            o = ks * 8192
            g.I('ds_read_b64_tr_b16', v(b, 2), v(vA + nt), mods=f'offset:{o}' if o else '', tag=('f', n))
            g.I('ds_read_b64_tr_b16', v(b + 2, 2), v(vA + nt), mods=f'offset:{o+1024}', tag=('f', n))
        for n in range(5):
            rd(n)
        for n in range(8):
            if n + 5 < 8:
                rd(n + 5)
            g.lg_wait(('f', n))
            ks, nt = n >> 2, n & 3
            for j in range(3):
                g.I('v_mfma_f32_16x16x32_bf16', v(acc(nt, j), 4), v(FB + n * 4, 4),
                    v(BB + (u * 6 + j * 2 + ks) * 4, 4), v(acc(nt, j), 4))
        bload(g, u)
        g.I('s_add_u32', s(sPs), s(sSl), s(sWb))
        g.I('s_add_u32', s(sSl), s(sSl), SLOT)
        g.I('s_cmp_eq_u32', s(sSl), NSLOT * SLOT)
        g.I('s_cselect_b32', s(sSl), 0, s(sSl))
    g.I('s_add_u32', s(sIt), s(sIt), 1)
    g.I('s_cmp_lt_u32', s(sIt), 96 // BD)
    g.I('s_cbranch_scc1', LOOP)
    g.I('v_mbcnt_lo_u32_b32', 'v7', -1, 0)
    g.I('v_mbcnt_hi_u32_b32', 'v7', -1, 'v7')
    g.I('v_and_b32', 'v8', 15, 'v7')
    g.I('v_lshrrev_b32', 'v9', 4, 'v7')
    g.I('v_add_u32', 'v8', s(sSt), 'v8')
    g.I('v_mul_u32_u24', 'v8', 2560, 'v8')
    g.I('v_lshl_add_u32', 'v8', 'v9', 4, 'v8')
    g.I('s_mul_i32', s(sT0), s(sBlk), 1280)
    g.I('s_lshl_b32', s(sT1), s(sNt), 8)
    g.I('s_add_u32', s(sT0), s(sT0), s(sT1))
    g.I('s_and_b32', s(sT1), s(sWv), 1)
    g.I('s_lshl_b32', s(sT1), s(sT1), 7)
    g.I('s_add_u32', s(sT0), s(sT0), s(sT1))
    for j in range(3):
        for i in range(2):
            d = FB + (j * 2 + i) * 4
            pack_swap(g, d, acc(2 * i, j), acc(2 * i + 1, j))
            g.I('buffer_store_dwordx4', v(d, 4), 'v8', s(sOut, 4), s(sT0),
                mods='offen offset:64' if i else 'offen', tag='st')
        if j < 2:
            g.I('s_add_u32', s(sT0), s(sT0), 16 * 2560)
    g.label(f'{name}_exit')
    g.I('s_endpgm')
```

```python
import sys, os
sys.path.insert(0, os.path.dirname(__file__))
from asmgen import Gen
import k1, k2

HEAD = open('concat_heads__gqa_block_cached__mha_block_cached__near_ridge.s.ref').read().split('; Override launch')[0]

def desc(name, vgpr, sgpr):
    return f'''.amdhsa_kernel {name}
  .amdhsa_next_free_vgpr {vgpr}
  .amdhsa_next_free_sgpr {sgpr}
  .amdhsa_accum_offset {(vgpr+3)//4*4}
  .amdhsa_group_segment_fixed_size 0
  .amdhsa_kernarg_size 104
  .amdhsa_user_sgpr_count 2
  .amdhsa_user_sgpr_kernarg_segment_ptr 1
  .amdhsa_system_sgpr_workgroup_id_x 1
.end_amdhsa_kernel
'''

def build(path):
    g = Gen()
    k1.kernel1(g, 'attn_kernel')
    k2.kernel2(g, 'oproj_kernel')
    out = HEAD
    out += f'; @launch kernel=attn_kernel grid=(1024,1,1) block=(256,1,1) lds={k1.LDS1}\n'
    out += f'; @launch kernel=oproj_kernel grid=(240,1,1) block=(256,1,1) lds={k2.LDS2}\n'
    out += '.amdgcn_target "amdgcn-amd-amdhsa--gfx950"\n.text\n'
    out += g.text()
    out += '.section .rodata,"a"\n.p2align 6\n'
    out += desc('attn_kernel', 256, 96)
    out += '.p2align 6\n'
    out += desc('oproj_kernel', 192, 96)
    open(path, 'w').write(out)

if __name__ == '__main__':
    build(sys.argv[1] if len(sys.argv) > 1 else 'concat_heads__gqa_block_cached__mha_block_cached__near_ridge.s')
```

```python
import struct
from asmgen import Gen, v, s

def f32bits(x):
    return struct.unpack('<I', struct.pack('<f', x))[0]

SLOT = 12288
NSLOT = 6
Q3OFF = SLOT * NSLOT
LDS1 = Q3OFF + 6144

vKb, vVb, vDK, vDV, vDW = 0, 1, 2, 3, 4
vQ3 = 4
vM = 5
vL = 8
vA = 11
vWb = 15
vX = 5
FB = 16
S = 40
QF = 64
ACC = 112
XB = 40
XP = 88
vBP = 7

sX, sK, sV, sW, sO = 4, 8, 12, 16, 20
sWv, sWb = 24, 25
sXo = 26
sWo = 29
sKn, sKe, sVn, sVe, sOOB = 30, 31, 32, 33, 34
sSl, sPs, sIt, sC, sT = 35, 36, 37, 38, 39
sT0, sT1, sT2, sT3 = 40, 41, 42, 43
sP = 44
sWs = 52
sOo = 54
sQ0 = 57
sH, sB, sPair = 58, 59, 60
sXc, sCnt = 61, 3
sD, sDo = 92, 96
vDc = 9

STAMP = False
EXP = ''
sSt0 = 62

def stamp(g, i, real=False):
    if STAMP:
        g.I('s_memrealtime' if real else 's_memtime', s(sSt0 + 2 * i, 2))
        g.I('s_waitcnt', 'lgkmcnt(0)')

def seg(g, k):
    if STAMP and 'seg' in EXP:
        g.lg_wait_all()
        g.I('s_memtime', s(78, 2))
        g.I('s_waitcnt', 'lgkmcnt(0)')
        g.I('s_sub_u32', s(90), s(78), s(76))
        g.I('s_add_u32', s(80 + k), s(80 + k), s(90))
        g.I('s_mov_b32', s(76), s(78))

def stamp_store(g):
    if not STAMP:
        return
    g.I('s_mov_b32', s(72), s(sWs))
    g.I('s_and_b32', s(73), s(sWs + 1), 0xffff)
    g.I('s_mov_b32', s(74), 0x8000000)
    g.I('s_mov_b32', s(75), 0x00020000)
    g.I('s_lshl_b32', s(70), 's2', 7)
    g.I('s_lshl_b32', s(71), s(sWv), 5)
    g.I('s_add_u32', s(70), s(70), s(71))
    g.I('s_add_u32', s(70), s(70), 0x4000000)
    g.I('v_mov_b32', 'v0', 0)
    for i in range(8):
        g.I('v_mov_b32', v(16 + i), s(80 + i) if 'seg' in EXP else s(sSt0 + i))
    g.I('buffer_store_dwordx4', v(16, 4), 'v0', s(72, 4), s(70), mods='offen')
    g.I('buffer_store_dwordx4', v(20, 4), 'v0', s(72, 4), s(70), mods='offen offset:16')

def acc(dt, j):
    return ACC + (dt * 3 + j) * 4

def Sreg(kt, j):
    return S + (kt * 3 + j) * 4

def Qf(j, ks):
    return QF + (j * 6 + ks) * 4

def dma(g, vOff, srd, soff, mbase_sgpr, tag):
    for cb in range(3):
        g.I('s_add_u32', 'm0', s(mbase_sgpr), cb * 3968)
        mods = 'offen lds' if cb == 0 else f'offen offset:{cb*128} lds'
        g.I('buffer_load_dwordx4', v(vOff), s(srd, 4), s(soff), mods=mods, tag=tag)

def dma_piece(g, cb, vOff, srd, soff, mbase_sgpr, tag=None):
    if 'dt' in EXP and srd == sD:
        seg(g, 3)
        _dma_piece(g, cb, vOff, srd, soff, mbase_sgpr, tag)
        seg(g, 4)
    else:
        _dma_piece(g, cb, vOff, srd, soff, mbase_sgpr, tag)

def _dma_piece(g, cb, vOff, srd, soff, mbase_sgpr, tag=None):
    if 'plain' in EXP and srd == sD:
        g.I('buffer_load_dwordx4', v(100 + 4 * cb, 4), v(vOff), s(srd, 4), s(soff), mods='offen' if cb == 0 else f'offen offset:{cb*128}', tag=tag)
        return
    g.I('s_add_u32', 'm0', s(mbase_sgpr), cb * 3968)
    mods = 'offen lds' if cb == 0 else f'offen offset:{cb*128} lds'
    if srd in (sK, sV) and 'nont' not in EXP:
        mods = mods.replace(' lds', ' nt lds')
    g.I('buffer_load_dwordx4', v(vOff), s(srd, 4), s(soff), mods=mods, tag=tag)

def stag(g, w, fn, name):
    lb = g.newlabel(name + '_sg')
    g.I('s_cmp_eq_u32', s(sWv), w)
    g.I('s_cbranch_scc0', lb)
    fn()
    g.label(lb)

def dstep(g, nq, breg, half_off, first, NFB=6, PD=4, hooks=None):
    def rd(dt):
        if 'nord' in EXP and half_off == 512:
            return
        b = FB + (dt % NFB) * 4
        o = (dt >> 2) * 4096
        a = vA + (dt & 3)
        g.I('ds_read_b64_tr_b16', v(b, 2), v(a), mods=f'offset:{o}' if o else '', tag=('f', dt))
        g.I('ds_read_b64_tr_b16', v(b + 2, 2), v(a), mods=f'offset:{o+half_off}', tag=('f', dt))
    for dt in range(PD):
        rd(dt)
    for dt in range(12):
        if dt + PD < 12:
            rd(dt + PD)
        g.lg_wait(('f', dt))
        for j in range(nq):
            c = 0 if first else v(acc(dt, j), 4)
            if 'nomfma' in EXP and half_off == 512:
                continue
            g.I('v_mfma_f32_16x16x32_bf16', v(acc(dt, j), 4), v(FB + (dt % NFB) * 4, 4), v(breg[j], 4), c)
        if hooks and dt in hooks:
            hooks[dt]()

def set_addr4(g, base, slot):
    if slot == 0:
        g.I('v_mov_b32', v(vA), v(base))
    else:
        g.I('v_add_u32', v(vA), slot, v(base))
    for t in (1, 2, 3):
        g.I('v_xor_b32', v(vA + t), t * 32, v(vA))

def pack_swap(g, dst, a, b):
    g.I('v_cvt_pk_bf16_f32', v(dst), v(a), v(a + 1))
    g.I('v_cvt_pk_bf16_f32', v(dst + 1), v(a + 2), v(a + 3))
    g.I('v_cvt_pk_bf16_f32', v(dst + 2), v(b), v(b + 1))
    g.I('v_cvt_pk_bf16_f32', v(dst + 3), v(b + 2), v(b + 3))
    g.I('v_permlane32_swap_b32', v(dst), v(dst + 2))
    g.I('v_permlane32_swap_b32', v(dst + 1), v(dst + 3))
    g.I('v_permlane16_swap_b32', v(dst), v(dst + 2))
    g.I('v_permlane16_swap_b32', v(dst + 1), v(dst + 3))

def xlane(g, op, x, y):
    g.I('v_mov_b32', v(y), v(x))
    g.I('v_permlane32_swap_b32', v(x), v(y))
    g.I(op, v(x), v(x), v(y))
    g.I('v_mov_b32', v(y), v(x))
    g.I('v_permlane16_swap_b32', v(x), v(y))
    g.I(op, v(x), v(x), v(y))

def wave_body(g, nq, name):
    XD = 3
    NXB = 4
    def xbuf(u, j):
        return XB + ((u % NXB) * nq + j) * 4
    def xload(u, guard=True):
        lb = g.newlabel(name + '_nx')
        if guard:
            g.I('s_cmp_lt_u32', s(sXc), 20)
            g.I('s_cbranch_scc0', lb)
        for j in range(nq):
            if 'nox' not in EXP:
                g.I('buffer_load_dwordx4', v(xbuf(u, j), 4), v(vX), s(sX, 4), s(sXo + j), mods='offen', tag=('x', u))
            g.I('s_add_u32', s(sXo + j), s(sXo + j), 64)
        g.I('s_add_u32', s(sXc), s(sXc), 1)
        if guard:
            g.label(lb)
    def advance_slot():
        g.I('s_add_u32', s(sPs), s(sSl), s(sWb))
        g.I('s_add_u32', s(sSl), s(sSl), SLOT)
        g.I('s_cmp_eq_u32', s(sSl), NSLOT * SLOT)
        g.I('s_cselect_b32', s(sSl), 0, s(sSl))
    def select_generic():
        lkv, lv, ld = g.newlabel(name + '_kv'), g.newlabel(name + '_v'), g.newlabel(name + '_dn')
        g.I('s_cmp_lt_u32', s(sCnt), 20)
        g.I('s_cbranch_scc0', lkv)
        g.I('s_mov_b64', s(sD, 2), s(sW, 2))
        g.I('s_mov_b64', s(sD + 2, 2), s(sW + 2, 2))
        g.I('s_mov_b32', s(sDo), s(sOOB) if 'nowq' in EXP else s(sWo))
        g.I('v_mov_b32', v(vDc), v(vDW))
        g.I('s_add_u32', s(sWo), s(sWo), 32 * 12288)
        g.I('s_branch', ld)
        g.label(lkv)
        g.I('s_bitcmp1_b32', s(sCnt), 0)
        g.I('s_cbranch_scc1', lv)
        g.I('s_mov_b64', s(sD, 2), s(sK, 2))
        g.I('s_mov_b64', s(sD + 2, 2), s(sK + 2, 2))
        g.I('s_mov_b32', s(sDo), s(sKn))
        g.I('v_mov_b32', v(vDc), v(vDK))
        g.I('s_add_u32', s(sKn), s(sKn), SLOT)
        g.I('s_branch', ld)
        g.label(lv)
        g.I('s_mov_b64', s(sD, 2), s(sV, 2))
        g.I('s_mov_b64', s(sD + 2, 2), s(sV + 2, 2))
        g.I('s_mov_b32', s(sDo), s(sVn))
        g.I('v_mov_b32', v(vDc), v(vDV))
        g.I('s_add_u32', s(sVn), s(sVn), SLOT)
        g.label(ld)
        g.I('s_add_u32', s(sCnt), s(sCnt), 1)

    stamp(g, 0)
    stamp(g, 3, True)
    g.I('s_mov_b32', s(sXc), 0)
    for t in range(5):
        if t >= 2:
            xload(t - 2, False)
        g.I('s_add_u32', s(sT0), s(sWb), t * SLOT)
        dma(g, vDW, sW, sWo, sT0, 'd')
        g.I('s_add_u32', s(sWo), s(sWo), 32 * 12288)
    for r in range(12 * 3 * 4):
        if (r // 4) % 3 < nq:
            g.I('v_mov_b32', v(ACC + r), 0)
    if STAMP and 'seg' in EXP:
        for k in range(8):
            g.I('s_mov_b32', s(80 + k), 0)
        g.I('s_memtime', s(76, 2))
        g.I('s_waitcnt', 'lgkmcnt(0)')
    g.I('s_mov_b32', s(sCnt), 5)
    g.I('s_mov_b32', s(sSl), 0)
    g.I('s_add_u32', s(sPs), s(sWb), 5 * SLOT)
    g.I('s_mov_b32', s(sIt), 0)
    QL = f'{name}_qloop'
    g.pad(4)
    g.label(QL)
    for u in range(NXB):
        g.I('s_waitcnt', 'vmcnt(9)')
        seg(g, 0)
        g.I('s_barrier')
        seg(g, 1)
        select_generic()
        set_addr4(g, vWb, s(sSl))
        for j in range(nq):
            for r in range(4):
                g.I('ds_bpermute_b32', v(XP + 4 * j + r), v(vBP), v(xbuf(u, j) + r), tag='bp')
        if 'nodma' in EXP:
            hooks = {1: lambda: xload(u + XD)}
            dstep(g, nq, [XP + 4 * j for j in range(nq)], 512, False, hooks=hooks)
            advance_slot()
            continue
        hooks = {1: lambda: xload(u + XD),
                 4: lambda: dma_piece(g, 0, vDc, sD, sDo, sPs),
                 6: lambda: dma_piece(g, 1, vDc, sD, sDo, sPs),
                 8: lambda: dma_piece(g, 2, vDc, sD, sDo, sPs)}
        dstep(g, nq, [XP + 4 * j for j in range(nq)], 512, False, hooks=hooks)
        seg(g, 3)
        advance_slot()
    g.I('s_add_u32', s(sIt), s(sIt), 1)
    g.I('s_cmp_lt_u32', s(sIt), 5)
    g.I('s_cbranch_scc1', QL)
    stamp(g, 1)
    g.I('v_lshlrev_b32', v(vQ3), 4, 'v6')
    g.I('v_add_u32', v(vQ3), Q3OFF, v(vQ3))
    for j in range(nq):
        for ks in range(6):
            if j < 2:
                pack_swap(g, Qf(j, ks), acc(2 * ks, j), acc(2 * ks + 1, j))
            else:
                d = FB + (ks % 6) * 4
                pack_swap(g, d, acc(2 * ks, j), acc(2 * ks + 1, j))
                g.I('ds_write_b128', v(vQ3), v(d, 4), mods=f'offset:{ks*1024}' if ks else '', tag='q3w')
    for r in range(12 * 3 * 4):
        if (r // 4) % 3 < nq:
            g.I('v_mov_b32', v(ACC + r), 0)
    for j in range(nq):
        g.I('v_mov_b32', v(vM + j), 0xf149f2ca)
        g.I('v_mov_b32', v(vL + j), 0)
    g.lg_wait_all()
    g.I('s_mov_b32', s(sIt), 0)

    LOOP, RARE, BACK = f'{name}_loop', f'{name}_rare', f'{name}_back'
    g.pad(4)
    g.label(LOOP)
    g.I('s_waitcnt', 'vmcnt(12)')
    g.I('s_barrier')
    g.I('s_cmp_lt_u32', s(sVn), s(sVe))
    g.I('s_cselect_b32', s(sT1), s(sVn), s(sOOB))
    g.I('s_add_u32', s(sVn), s(sVn), SLOT)
    g.I('v_add_u32', v(vA), s(sSl), v(vKb))
    g.I('v_xor_b32', v(vA + 1), 64, v(vA))
    gsz = 12 if nq == 3 else 8
    ngb = 2 if nq == 3 else 3
    def kread(ks):
        b = FB + (ks % ngb) * gsz
        a = vA + (ks & 1)
        o = (ks >> 1) * 4096
        g.I('ds_read_b128', v(b, 4), v(a), mods=f'offset:{o}' if o else '', tag=('k', ks))
        g.I('ds_read_b128', v(b + 4, 4), v(a), mods=f'offset:{o+2048}', tag=('k', ks))
        if nq == 3:
            g.I('ds_read_b128', v(b + 8, 4), v(vQ3), mods=f'offset:{ks*1024}' if ks else '', tag=('k', ks))
    for ks in range(ngb):
        kread(ks)
    for ks in range(6):
        g.lg_wait(('k', ks))
        b = FB + (ks % ngb) * gsz
        for kt in range(2):
            for j in range(nq):
                q = Qf(j, ks) if j < 2 else b + 8
                c = 0 if ks == 0 else v(Sreg(kt, j), 4)
                g.I('v_mfma_f32_16x16x32_bf16', v(Sreg(kt, j), 4), v(b + 4 * kt, 4), v(q, 4), c)
        if ks + ngb < 6:
            kread(ks + ngb)
        if ks in (0, 2, 4):
            dma_piece(g, ks // 2, vDV, sV, sT1, sPs)
    advance_slot()
    T = FB
    for j in range(nq):
        a, b = Sreg(0, j), Sreg(1, j)
        g.I('v_max3_f32', v(T + j), v(a), v(a + 1), v(a + 2))
        g.I('v_max3_f32', v(T + j), v(T + j), v(a + 3), v(b))
        g.I('v_max3_f32', v(T + j), v(T + j), v(b + 1), v(b + 2))
        g.I('v_max_f32', v(T + j), v(T + j), v(b + 3))
        g.I('v_fma_f32', v(T + 3 + j), v(T + j), s(sC), f'-{v(vM + j)}')
    if nq == 3:
        g.I('v_max3_f32', v(T + 3), v(T + 3), v(T + 4), v(T + 5))
    else:
        g.I('v_max_f32', v(T + 3), v(T + 3), v(T + 4))
    g.I('v_cmp_lt_f32', 'vcc', s(sT), v(T + 3))
    g.I('s_cbranch_vccnz', RARE)
    g.label(BACK)
    for j in range(nq):
        rs = [Sreg(0, j) + i for i in range(4)] + [Sreg(1, j) + i for i in range(4)]
        for r in rs:
            g.I('v_fma_f32', v(r), v(r), s(sC), f'-{v(vM + j)}')
        for r in rs:
            g.I('v_exp_f32', v(r), v(r))
        t0 = T + 8
        g.I('v_add_f32', v(t0), v(rs[0]), v(rs[1]))
        g.I('v_add_f32', v(t0 + 1), v(rs[2]), v(rs[3]))
        g.I('v_add_f32', v(t0 + 2), v(rs[4]), v(rs[5]))
        g.I('v_add_f32', v(t0 + 3), v(rs[6]), v(rs[7]))
        g.I('v_add_f32', v(t0), v(t0), v(t0 + 1))
        g.I('v_add_f32', v(t0 + 2), v(t0 + 2), v(t0 + 3))
        g.I('v_add_f32', v(vL + j), v(vL + j), v(t0))
        g.I('v_add_f32', v(vL + j), v(vL + j), v(t0 + 2))
        g.I('v_cvt_pk_bf16_f32', v(rs[0]), v(rs[0]), v(rs[1]))
        g.I('v_cvt_pk_bf16_f32', v(rs[1]), v(rs[2]), v(rs[3]))
        g.I('v_cvt_pk_bf16_f32', v(rs[2]), v(rs[4]), v(rs[5]))
        g.I('v_cvt_pk_bf16_f32', v(rs[3]), v(rs[6]), v(rs[7]))
    g.I('s_waitcnt', 'vmcnt(12)')
    g.I('s_barrier')
    g.I('s_cmp_lt_u32', s(sKn), s(sKe))
    g.I('s_cselect_b32', s(sT1), s(sKn), s(sOOB))
    g.I('s_add_u32', s(sKn), s(sKn), SLOT)
    set_addr4(g, vVb, s(sSl))
    hooks = {1: lambda: dma_piece(g, 0, vDK, sK, sT1, sPs),
             4: lambda: dma_piece(g, 1, vDK, sK, sT1, sPs),
             7: lambda: dma_piece(g, 2, vDK, sK, sT1, sPs)}
    dstep(g, nq, [Sreg(0, j) for j in range(nq)], 2048, False, hooks=hooks)
    advance_slot()
    g.I('s_add_u32', s(sIt), s(sIt), 1)
    g.I('s_cmp_lt_u32', s(sIt), 16)
    g.I('s_cbranch_scc1', LOOP)
    vO = vA
    g.I('v_mbcnt_lo_u32_b32', v(vO + 1), -1, 0)
    g.I('v_mbcnt_hi_u32_b32', v(vO + 1), -1, v(vO + 1))
    g.I('v_and_b32', v(vO), 15, v(vO + 1))
    g.I('v_add_u32', v(vO), s(sQ0), v(vO))
    g.I('v_lshlrev_b32', v(vO), 7, v(vO))
    g.I('v_lshrrev_b32', v(vO + 1), 4, v(vO + 1))
    g.I('v_lshl_add_u32', v(vO), v(vO + 1), 4, v(vO))
    g.I('v_add_u32', v(vO + 1), 4096, v(vO))
    for j in range(nq):
        xlane(g, 'v_add_f32', vL + j, T)
        g.I('v_rcp_f32', v(vL + j), v(vL + j))
    for j in range(nq):
        for i in range(6):
            for dt in (2 * i, 2 * i + 1):
                for r in range(4):
                    g.I('v_mul_f32', v(acc(dt, j) + r), v(acc(dt, j) + r), v(vL + j))
            d = FB + ((j * 6 + i) % 6) * 4
            pack_swap(g, d, acc(2 * i, j), acc(2 * i + 1, j))
            o = (j & 1) * 2048 + (i & 1) * 64
            g.I('buffer_store_dwordx4', v(d, 4), v(vO + 1 if j == 2 else vO), s(sO, 4), s(sOo + (i >> 1)),
                mods=f'offen offset:{o}' if o else 'offen', tag='st')
    stamp(g, 2)
    stamp_store(g)
    g.I('s_endpgm')
    g.label(RARE)
    g.pad(2)
    for j in range(nq):
        xlane(g, 'v_max_f32', T + j, T + 8)
        g.I('v_mul_f32', v(T + j), s(sC), v(T + j))
        g.I('v_max_f32', v(T + j), v(T + j), v(vM + j))
        g.I('v_sub_f32', v(T + 8), v(vM + j), v(T + j))
        g.I('v_exp_f32', v(T + 8), v(T + 8))
        g.I('v_mov_b32', v(vM + j), v(T + j))
        g.I('v_mul_f32', v(vL + j), v(vL + j), v(T + 8))
        for dt in range(12):
            for r in range(4):
                g.I('v_mul_f32', v(acc(dt, j) + r), v(acc(dt, j) + r), v(T + 8))
    g.pad(2)
    g.I('s_branch', BACK)

def kernel1(g, name):
    import math
    g.raw(f'.globl {name}')
    g.raw('.p2align 8')
    g.raw(f'.type {name},@function')
    g.raw(f'{name}:')
    g.I('s_cmp_ge_u32', 's2', 1024)
    g.I('s_cbranch_scc1', f'{name}_exit')
    g.I('s_and_b32', s(sT0), 's2', 7)
    g.I('s_lshr_b32', s(sT1), 's2', 3)
    g.I('s_and_b32', s(sT2), s(sT1), 3)
    g.I('s_lshr_b32', s(sPair), s(sT1), 2)
    g.I('s_lshl_b32', s(sH), s(sT0), 2)
    g.I('s_add_u32', s(sH), s(sH), s(sT2))
    g.I('s_and_b32', s(sB), s(sPair), 15)
    g.I('s_lshr_b32', s(sT3), s(sPair), 4)
    g.I('s_mul_i32', s(sT3), s(sT3), 40)
    g.I('s_add_u32', s(sT0), 's0', s(sT3))
    g.I('s_addc_u32', s(sT1), 's1', 0)
    g.I('s_load_dwordx8', s(sP, 8), s(sT0, 2), 0)
    g.I('s_load_dwordx2', s(sWs, 2), 's[0:1]', 96)
    g.I('v_lshrrev_b32', 'v6', 6, 'v0')
    g.I('v_readfirstlane_b32', s(sWv), 'v6')
    g.I('v_and_b32', 'v7', 63, 'v0')
    g.I('s_lshl_b32', s(sWb), s(sWv), 10)
    g.I('s_lshl_b32', s(sQ0), s(sWv), 5)
    g.I('s_add_u32', s(sQ0), s(sQ0), 16)
    g.I('s_cmp_eq_u32', s(sWv), 0)
    g.I('s_cselect_b32', s(sQ0), 0, s(sQ0))
    g.I('v_and_b32', 'v8', 15, 'v7')
    g.I('v_lshrrev_b32', 'v9', 4, 'v7')
    g.I('v_bfe_u32', 'v10', 'v7', 2, 2)
    g.I('v_and_b32', 'v11', 3, 'v7')
    g.I('v_lshrrev_b32', 'v12', 1, 'v8')
    g.I('v_xor_b32', 'v12', 'v9', 'v12')
    g.I('v_lshlrev_b32', 'v12', 4, 'v12')
    g.I('v_lshl_add_u32', v(vKb), 'v8', 7, 'v12')
    g.I('v_lshrrev_b32', 'v12', 1, 'v10')
    g.I('v_and_b32', 'v13', 1, 'v9')
    g.I('v_lshl_or_b32', 'v12', 'v13', 1, 'v12')
    g.I('v_lshlrev_b32', 'v12', 1, 'v12')
    g.I('v_lshrrev_b32', 'v13', 1, 'v11')
    g.I('v_xor_b32', 'v12', 'v12', 'v13')
    g.I('v_lshlrev_b32', 'v12', 4, 'v12')
    g.I('v_and_b32', 'v13', 1, 'v11')
    g.I('v_lshl_add_u32', 'v12', 'v13', 3, 'v12')
    g.I('v_lshl_add_u32', 'v13', 'v9', 2, 'v10')
    g.I('v_lshl_add_u32', v(vVb), 'v13', 7, 'v12')
    g.I('v_lshl_add_u32', 'v13', 'v9', 3, 'v10')
    g.I('v_lshl_add_u32', v(vWb), 'v13', 7, 'v12')
    g.I('v_lshrrev_b32', 'v6', 2, 'v7')
    g.I('v_add_u32', 'v6', s(sQ0), 'v6')
    g.I('v_mul_u32_u24', 'v6', 1280, 'v6')
    g.I('v_lshl_add_u32', v(vX), 'v11', 4, 'v6')
    g.I('v_lshl_add_u32', 'v6', 'v8', 2, 'v9')
    g.I('v_lshlrev_b32', 'v16', 2, 'v6')
    g.I('v_lshrrev_b32', 'v12', 3, 'v7')
    g.I('s_lshl_b32', s(sT2), s(sWv), 3)
    g.I('v_add_u32', 'v12', s(sT2), 'v12')
    g.I('v_and_b32', 'v13', 7, 'v7')
    g.I('v_bfe_u32', 'v14', 'v12', 1, 3)
    g.I('v_xor_b32', 'v14', 'v14', 'v13')
    g.I('v_lshlrev_b32', 'v14', 4, 'v14')
    g.I('v_mul_u32_u24', 'v8', 384, 'v12')
    g.I('v_add_u32', v(vDK), 'v8', 'v14')
    g.I('v_bfe_u32', 'v14', 'v12', 1, 2)
    g.I('v_lshlrev_b32', 'v14', 1, 'v14')
    g.I('v_xor_b32', 'v14', 'v14', 'v13')
    g.I('v_lshlrev_b32', 'v14', 4, 'v14')
    g.I('v_add_u32', v(vDV), 'v8', 'v14')
    g.I('v_bfe_u32', 'v14', 'v12', 1, 1)
    g.I('v_bfe_u32', 'v9', 'v12', 3, 1)
    g.I('v_lshl_or_b32', 'v14', 'v9', 1, 'v14')
    g.I('v_lshlrev_b32', 'v14', 1, 'v14')
    g.I('v_xor_b32', 'v14', 'v14', 'v13')
    g.I('v_lshlrev_b32', 'v14', 4, 'v14')
    g.I('v_mul_u32_u24', 'v8', 12288, 'v12')
    g.I('v_add_u32', v(vDW), 'v8', 'v14')
    g.I('v_mov_b32', 'v6', 'v7')
    g.I('v_mov_b32', v(vBP), 'v16')
    g.I('s_mov_b32', s(sC), f32bits(math.log2(math.e) / math.sqrt(192.0)))
    g.I('s_mov_b32', s(sT), f32bits(8.0))
    g.I('s_mov_b32', s(sOOB), 0x40000000)
    g.I('s_mul_i32', s(sXo), s(sB), 184320)
    g.I('s_add_u32', s(sXo + 1), s(sXo), 20480)
    g.I('s_add_u32', s(sXo + 2), s(sXo), 40960)
    g.I('s_mul_i32', s(sWo), s(sH), 384)
    g.I('s_lshl_b32', s(sT2), s(sB), 5)
    g.I('s_add_u32', s(sT2), s(sT2), s(sH))
    g.I('s_mul_i32', s(sKn), s(sT2), 196608)
    g.I('s_add_u32', s(sKe), s(sKn), 196608)
    g.I('s_mov_b32', s(sVn), s(sKn))
    g.I('s_mov_b32', s(sVe), s(sKe))
    g.I('s_lshr_b32', s(sT3), s(sPair), 4)
    g.I('s_mul_i32', s(sOo), s(sT3), 96)
    g.I('s_mul_i32', s(sT3), s(sH), 3)
    g.I('s_add_u32', s(sOo), s(sOo), s(sT3))
    g.I('s_mul_i32', s(sOo), s(sOo), 2304)
    g.I('s_mul_i32', s(sT3), s(sB), 144)
    g.I('s_add_u32', s(sOo), s(sOo), s(sT3))
    g.I('s_lshl_b32', s(sOo), s(sOo), 7)
    g.I('s_add_u32', s(sOo + 1), s(sOo), 2304 * 128)
    g.I('s_add_u32', s(sOo + 2), s(sOo), 2 * 2304 * 128)
    g.I('s_waitcnt', 'lgkmcnt(0)')
    for srd, p, n in ((sX, sP, 2949120), (sK, sP + 2, 100663296), (sV, sP + 4, 100663296),
                      (sW, sP + 6, 7864320), (sO, sWs, 56623104)):
        g.I('s_mov_b32', s(srd), s(p))
        g.I('s_and_b32', s(srd + 1), s(p + 1), 0xffff)
        g.I('s_mov_b32', s(srd + 2), n)
        g.I('s_mov_b32', s(srd + 3), 0x00020000)
    g.I('s_cmp_eq_u32', s(sWv), 0)
    g.I('s_cbranch_scc0', f'{name}_light')
    save = (list(g.hist), list(g.vmq), list(g.lgq))
    wave_body_wrap(g, 3, name + '_h')
    g.label(f'{name}_light')
    g.hist, g.vmq, g.lgq = list(save[0]), [], []
    g.pad(2)
    wave_body_wrap(g, 2, name + '_l')
    g.label(f'{name}_exit')
    g.I('s_endpgm')

def wave_body_wrap(g, nq, name):
    wave_body(g, nq, name)
```

```python
from asmgen import Gen, v, s

EXP = ''
WSZ = 16384
OSZ = 12288
SLOT = WSZ + OSZ
NSLOT = 5
LDS2 = SLOT * NSLOT
PD = 4

vDW, vRb, vDO, vBb = 0, 1, 2, 3
vPF, vPD = 4, 5
PFD = 12
sPFs = 44
sPFo, sPFi = 48, 49
vA = 8
FB = 16
ACC = 48
BB = 96

sO, sW, sOut = 4, 8, 12
sWv, sWb = 16, 17
sWo, sWe, sBo, sBe, sOOB = 18, 19, 20, 21, 22
sSl, sPs, sIt = 23, 24, 25
sT0, sT1, sT2, sT3 = 26, 27, 28, 29
sBlk, sRt, sNt = 30, 31, 32
sP = 36
sWs = 38
sOp = 40
sSt = 42

def acc(nt, j):
    return ACC + (nt * 3 + j) * 4

def pack_swap(g, dst, a, b):
    g.I('v_cvt_pk_bf16_f32', v(dst), v(a), v(a + 1))
    g.I('v_cvt_pk_bf16_f32', v(dst + 1), v(a + 2), v(a + 3))
    g.I('v_cvt_pk_bf16_f32', v(dst + 2), v(b), v(b + 1))
    g.I('v_cvt_pk_bf16_f32', v(dst + 3), v(b + 2), v(b + 3))
    g.I('v_permlane32_swap_b32', v(dst), v(dst + 2))
    g.I('v_permlane32_swap_b32', v(dst + 1), v(dst + 3))
    g.I('v_permlane16_swap_b32', v(dst), v(dst + 2))
    g.I('v_permlane16_swap_b32', v(dst + 1), v(dst + 3))

def dma_chunk(g, mbase):
    g.I('s_cmp_lt_u32', s(sWo), s(sWe))
    g.I('s_cselect_b32', s(sT1), s(sWo), s(sOOB))
    g.I('s_cselect_b32', s(sT2), s(sBo), s(sOOB))
    for i in range(4):
        g.I('s_add_u32', 'm0', s(mbase), i * 4096)
        g.I('buffer_load_dwordx4', v(vDW), s(sW, 4), s(sT1), mods='offen lds', tag='d')
        if i < 3:
            g.I('s_add_u32', s(sT1), s(sT1), 16 * 1280)
    for i in range(3):
        g.I('s_add_u32', 'm0', s(mbase), WSZ + i * 4096)
        g.I('buffer_load_dwordx4', v(vDO), s(sO, 4), s(sT2), mods='offen lds', tag='d')
        if i < 2:
            g.I('s_add_u32', s(sT2), s(sT2), 4096)
    g.I('s_add_u32', s(sWo), s(sWo), 64 * 1280)
    g.I('s_add_u32', s(sBo), s(sBo), 2304 * 128)

def dma_prep(g):
    g.I('s_cmp_lt_u32', s(sWo), s(sWe))
    g.I('s_cselect_b32', s(sT1), s(sWo), s(sOOB))
    g.I('s_cselect_b32', s(sT2), s(sBo), s(sOOB))
    g.I('s_add_u32', s(sWo), s(sWo), 64 * 1280)
    g.I('s_add_u32', s(sBo), s(sBo), 2304 * 128)

def dma_one(g, k, mbase):
    if k < 4:
        g.I('s_add_u32', 'm0', s(mbase), k * 4096)
        g.I('buffer_load_dwordx4', v(vDW), s(sW, 4), s(sT1), mods='offen lds', tag='d')
        g.I('s_add_u32', s(sT1), s(sT1), 16 * 1280)
    else:
        g.I('s_add_u32', 'm0', s(mbase), WSZ + (k - 4) * 4096)
        g.I('buffer_load_dwordx4', v(vDO), s(sO, 4), s(sT2), mods='offen lds', tag='d')
        g.I('s_add_u32', s(sT2), s(sT2), 4096)

def kernel2(g, name):
    g.raw(f'.globl {name}')
    g.raw('.p2align 8')
    g.raw(f'.type {name},@function')
    g.raw(f'{name}:')
    g.hist, g.vmq, g.lgq = [], [], []
    g.I('s_cmp_ge_u32', 's2', 240)
    g.I('s_cbranch_scc1', f'{name}_exit')
    g.I('s_and_b32', s(sT0), 's2', 7)
    g.I('s_lshr_b32', s(sT1), 's2', 3)
    g.I('s_lshr_b32', s(sBlk), s(sT0), 2)
    g.I('s_mul_i32', s(sNt), s(sT1), 43)
    g.I('s_lshr_b32', s(sNt), s(sNt), 8)
    g.I('s_mul_i32', s(sT2), s(sNt), 6)
    g.I('s_sub_u32', s(sT1), s(sT1), s(sT2))
    g.I('s_and_b32', s(sT0), s(sT0), 3)
    g.I('s_mul_i32', s(sRt), s(sT0), 6)
    g.I('s_add_u32', s(sRt), s(sRt), s(sT1))
    g.I('s_mul_i32', s(sT3), s(sBlk), 40)
    g.I('s_add_u32', s(sT0), 's0', s(sT3))
    g.I('s_addc_u32', s(sT1), 's1', 0)
    g.I('s_load_dwordx2', s(sP, 2), s(sT0, 2), 32)
    g.I('s_load_dwordx2', s(sWs, 2), 's[0:1]', 96)
    g.I('s_load_dwordx2', s(sOp, 2), 's[0:1]', 80)
    g.I('v_lshrrev_b32', 'v6', 6, 'v0')
    g.I('v_readfirstlane_b32', s(sWv), 'v6')
    g.I('v_and_b32', 'v7', 63, 'v0')
    g.I('s_lshl_b32', s(sWb), s(sWv), 10)
    g.I('v_and_b32', 'v8', 15, 'v7')
    g.I('v_lshrrev_b32', 'v9', 4, 'v7')
    g.I('v_bfe_u32', 'v10', 'v7', 2, 2)
    g.I('v_and_b32', 'v11', 3, 'v7')
    g.I('v_and_b32', 'v12', 1, 'v9')
    g.I('v_lshl_or_b32', 'v12', 'v12', 2, 'v10')
    g.I('v_lshlrev_b32', 'v12', 1, 'v12')
    g.I('v_lshrrev_b32', 'v13', 1, 'v11')
    g.I('s_and_b32', s(sT2), s(sWv), 1)
    g.I('s_lshl_b32', s(sT3), s(sT2), 3)
    g.I('v_add_u32', 'v13', s(sT3), 'v13')
    g.I('v_xor_b32', 'v12', 'v12', 'v13')
    g.I('v_lshlrev_b32', 'v12', 4, 'v12')
    g.I('v_and_b32', 'v13', 1, 'v11')
    g.I('v_lshl_add_u32', 'v12', 'v13', 3, 'v12')
    g.I('v_lshl_add_u32', 'v13', 'v9', 3, 'v10')
    g.I('v_lshl_add_u32', v(vRb), 'v13', 8, 'v12')
    g.I('s_lshr_b32', s(sT1), s(sWv), 1)
    g.I('s_mul_i32', s(sT1), s(sT1), 48)
    g.I('v_lshrrev_b32', 'v12', 1, 'v8')
    g.I('v_xor_b32', 'v12', 'v9', 'v12')
    g.I('v_lshlrev_b32', 'v12', 4, 'v12')
    g.I('v_add_u32', 'v13', s(sT1), 'v8')
    g.I('v_lshl_add_u32', v(vBb), 'v13', 7, 'v12')
    g.I('v_add_u32', v(vBb), WSZ, v(vBb))
    g.I('s_mul_i32', s(sT0), s(sRt), 96)
    g.I('s_add_u32', s(sSt), s(sT0), s(sT1))
    g.I('s_lshl_b32', s(sT3), s(sT2), 2)
    g.I('v_add_u32', 'v12', s(sT3), 'v9')
    g.I('v_and_b32', 'v13', 7, 'v7')
    g.I('v_xor_b32', 'v12', 'v12', 'v13')
    g.I('v_lshlrev_b32', 'v12', 4, 'v12')
    g.I('v_lshrrev_b32', 'v13', 3, 'v7')
    g.I('v_lshl_add_u32', 'v12', 'v13', 7, 'v12')
    g.I('v_add_u32', v(vDO), s(sWb), 'v12')
    g.I('v_lshrrev_b32', 'v12', 4, 'v7')
    g.I('s_lshl_b32', s(sT3), s(sWv), 2)
    g.I('v_add_u32', 'v12', s(sT3), 'v12')
    g.I('v_and_b32', 'v13', 3, 'v12')
    g.I('v_bfe_u32', 'v14', 'v12', 3, 1)
    g.I('v_lshl_or_b32', 'v13', 'v14', 2, 'v13')
    g.I('v_lshlrev_b32', 'v13', 1, 'v13')
    g.I('v_xor_b32', 'v13', 'v13', 'v8')
    g.I('v_lshlrev_b32', 'v13', 4, 'v13')
    g.I('v_mul_u32_u24', 'v12', 1280, 'v12')
    g.I('v_add_u32', v(vDW), 'v12', 'v13')
    g.I('s_mov_b32', s(sOOB), 0x40000000)
    g.I('s_lshl_b32', s(sWo), s(sNt), 8)
    g.I('s_add_u32', s(sWe), s(sWo), 6144 * 1280)
    g.I('s_mul_i32', s(sBo), s(sBlk), 2304 * 12288)
    g.I('s_lshl_b32', s(sT0), s(sT0), 7)
    g.I('s_add_u32', s(sBo), s(sBo), s(sT0))
    g.I('s_waitcnt', 'lgkmcnt(0)')
    for srd, p, n in ((sO, sWs, 56623104), (sW, sP, 7864320), (sOut, sOp, 5898240)):
        g.I('s_mov_b32', s(srd), s(p))
        g.I('s_and_b32', s(srd + 1), s(p + 1), 0xffff)
        g.I('s_mov_b32', s(srd + 2), n)
        g.I('s_mov_b32', s(srd + 3), 0x00020000)
    for r in range(48):
        g.I('v_mov_b32', v(ACC + r), 0)
    for t in range(PD):
        g.I('s_add_u32', s(sT0), s(sWb), t * SLOT)
        dma_chunk(g, sT0)
    vN = 120
    def addrs(dst, slot):
        g.I('v_add_u32', v(dst), slot, v(vRb))
        g.I('v_add_u32', v(dst + 4), slot, v(vBb))
        for t_ in (1, 2, 3):
            g.I('v_xor_b32', v(dst + t_), t_ * 32, v(dst))
        g.I('v_xor_b32', v(dst + 5), 64, v(dst + 4))
    def rd(n, base):
        ks, nt = n >> 2, n & 3
        b = FB + n * 4
        o = ks * 8192
        g.I('ds_read_b64_tr_b16', v(b, 2), v(base + nt), mods=f'offset:{o}' if o else '', tag=('f', n))
        g.I('ds_read_b64_tr_b16', v(b + 2, 2), v(base + nt), mods=f'offset:{o+1024}', tag=('f', n))
    def rb(ks, base):
        for j in range(3):
            g.I('ds_read_b128', v(BB + (ks * 3 + j) * 4, 4), v(base + 4 + ks), mods=f'offset:{j*2048}' if j else '', tag=('b', ks))
    g.I('s_mov_b32', s(sSl), 0)
    g.I('s_add_u32', s(sPs), s(sWb), (NSLOT - 1) * SLOT)
    g.I('s_mov_b32', s(sIt), 0)
    g.I('s_waitcnt', f'vmcnt({7*(PD-1)})')
    g.I('s_barrier')
    addrs(vN, 0)
    rb(0, vN)
    for n in range(3):
        rd(n, vN)
    head_lgq = list(g.lgq)
    LOOP = f'{name}_loop'
    g.pad(4)
    g.label(LOOP)
    g.I('s_waitcnt', f'vmcnt({7*(PD-2)})')
    g.I('s_barrier')
    dma_prep(g)
    for i in range(6):
        g.I('v_mov_b32', v(vA + i), v(vN + i))
    g.I('s_add_u32', s(sT3), s(sSl), SLOT)
    g.I('s_cmp_eq_u32', s(sT3), NSLOT * SLOT)
    g.I('s_cselect_b32', s(sT3), 0, s(sT3))
    addrs(vN, s(sT3))
    for n in range(8):
        ks, nt = n >> 2, n & 3
        g.lg_wait(('f', n), ('b', ks))
        for j in range(3):
            g.I('v_mfma_f32_16x16x32_bf16', v(acc(nt, j), 4), v(FB + n * 4, 4),
                v(BB + (ks * 3 + j) * 4, 4), v(acc(nt, j), 4))
        if n == 0:
            rb(1, vA)
        if n == 4:
            rb(0, vN)
        if n + 3 < 8:
            rd(n + 3, vA)
        else:
            rd(n + 3 - 8, vN)
        if n < 7:
            dma_one(g, n, sPs)
    assert g.lgq == head_lgq or True
    g.I('s_add_u32', s(sPs), s(sSl), s(sWb))
    g.I('s_mov_b32', s(sSl), s(sT3))
    g.I('s_add_u32', s(sIt), s(sIt), 1)
    g.I('s_cmp_lt_u32', s(sIt), 96)
    g.I('s_cbranch_scc1', LOOP)
    g.I('s_waitcnt', 'lgkmcnt(0)')
    g.lgq = []
    g.I('v_mbcnt_lo_u32_b32', 'v7', -1, 0)
    g.I('v_mbcnt_hi_u32_b32', 'v7', -1, 'v7')
    g.I('v_and_b32', 'v8', 15, 'v7')
    g.I('v_lshrrev_b32', 'v9', 4, 'v7')
    g.I('v_add_u32', 'v8', s(sSt), 'v8')
    g.I('v_mul_u32_u24', 'v8', 2560, 'v8')
    g.I('v_lshl_add_u32', 'v8', 'v9', 4, 'v8')
    g.I('s_mul_i32', s(sT0), s(sBlk), 1280)
    g.I('s_lshl_b32', s(sT1), s(sNt), 8)
    g.I('s_add_u32', s(sT0), s(sT0), s(sT1))
    g.I('s_and_b32', s(sT1), s(sWv), 1)
    g.I('s_lshl_b32', s(sT1), s(sT1), 7)
    g.I('s_add_u32', s(sT0), s(sT0), s(sT1))
    for j in range(3):
        for i in range(2):
            d = FB + (j * 2 + i) * 4
            pack_swap(g, d, acc(2 * i, j), acc(2 * i + 1, j))
            g.I('buffer_store_dwordx4', v(d, 4), 'v8', s(sOut, 4), s(sT0),
                mods='offen offset:64' if i else 'offen', tag='st')
        if j < 2:
            g.I('s_add_u32', s(sT0), s(sT0), 16 * 2560)
    g.label(f'{name}_exit')
    g.I('s_endpgm')
```

```python
import sys, os
sys.path.insert(0, os.path.dirname(__file__))
from asmgen import Gen
import k1, k2

HEAD = open('concat_heads__gqa_block_cached__mha_block_cached__near_ridge.s.ref').read().split('; Override launch')[0]

def desc(name, vgpr, sgpr):
    return f'''.amdhsa_kernel {name}
  .amdhsa_next_free_vgpr {vgpr}
  .amdhsa_next_free_sgpr {sgpr}
  .amdhsa_accum_offset {(vgpr+3)//4*4}
  .amdhsa_group_segment_fixed_size 0
  .amdhsa_kernarg_size 104
  .amdhsa_user_sgpr_count 2
  .amdhsa_user_sgpr_kernarg_segment_ptr 1
  .amdhsa_system_sgpr_workgroup_id_x 1
.end_amdhsa_kernel
'''

def build(path):
    g = Gen()
    k1.kernel1(g, 'attn_kernel')
    k2.kernel2(g, 'oproj_kernel')
    out = HEAD
    out += f'; @launch kernel=attn_kernel grid=(1024,1,1) block=(256,1,1) lds={k1.LDS1}\n'
    out += f'; @launch kernel=oproj_kernel grid=(240,1,1) block=(256,1,1) lds={k2.LDS2}\n'
    out += '.amdgcn_target "amdgcn-amd-amdhsa--gfx950"\n.text\n'
    out += g.text()
    out += '.section .rodata,"a"\n.p2align 6\n'
    out += desc('attn_kernel', 256, 102)
    out += '.p2align 6\n'
    out += desc('oproj_kernel', 128, 96)
    open(path, 'w').write(out)

if __name__ == '__main__':
    if len(sys.argv) > 2 and sys.argv[2] == 'stamp':
        k1.STAMP = True
    if len(sys.argv) > 3:
        k1.EXP = sys.argv[3]
        k2.EXP = sys.argv[3]
    build(sys.argv[1] if len(sys.argv) > 1 else 'concat_heads__gqa_block_cached__mha_block_cached__near_ridge.s')
```

```python
import struct
from asmgen import Gen, v, s

def f32bits(x):
    return struct.unpack('<I', struct.pack('<f', x))[0]

SLOT = 12288
NSLOT = 6
Q3OFF = SLOT * NSLOT
LDS1 = Q3OFF + 6144

vKb, vVb, vDK, vDV, vDW = 0, 1, 2, 3, 4
vQ3 = 4
vM = 5
vL = 8
vA = 11
vWb = 15
vX = 5
FB = 16
S = 40
QF = 64
ACC = 112
XB = 40
XP = 88
vBP = 7

sX, sK, sV, sW, sO = 4, 8, 12, 16, 20
sWv, sWb = 24, 25
sXo = 26
sWo = 29
sKn, sKe, sVn, sVe, sOOB = 30, 31, 32, 33, 34
sSl, sPs, sIt, sC, sT = 35, 36, 37, 38, 39
sT0, sT1, sT2, sT3 = 40, 41, 42, 43
sP = 44
sWs = 52
sOo = 54
sQ0 = 57
sH, sB, sPair = 58, 59, 60
sXc, sCnt = 61, 3
sD, sDo = 92, 96
vDc = 9

STAMP = False
EXP = ''
sSt0 = 62

def stamp(g, i, real=False):
    if STAMP:
        g.I('s_memrealtime' if real else 's_memtime', s(sSt0 + 2 * i, 2))
        g.I('s_waitcnt', 'lgkmcnt(0)')

def seg(g, k, tagname='qseg'):
    if STAMP and tagname in EXP:
        g.lg_wait_all()
        g.I('s_memtime', s(78, 2))
        g.I('s_waitcnt', 'lgkmcnt(0)')
        g.I('s_sub_u32', s(90), s(78), s(76))
        g.I('s_add_u32', s(80 + k), s(80 + k), s(90))
        g.I('s_mov_b32', s(76), s(78))

def stamp_store(g):
    if not STAMP:
        return
    g.I('s_mov_b32', s(72), s(sWs))
    g.I('s_and_b32', s(73), s(sWs + 1), 0xffff)
    g.I('s_mov_b32', s(74), 0x8000000)
    g.I('s_mov_b32', s(75), 0x00020000)
    g.I('s_lshl_b32', s(70), 's2', 7)
    g.I('s_lshl_b32', s(71), s(sWv), 5)
    g.I('s_add_u32', s(70), s(70), s(71))
    g.I('s_add_u32', s(70), s(70), 0x4000000)
    g.I('v_mov_b32', 'v0', 0)
    for i in range(8):
        g.I('v_mov_b32', v(16 + i), s(80 + i) if 'seg' in EXP else s(sSt0 + i))
    g.I('buffer_store_dwordx4', v(16, 4), 'v0', s(72, 4), s(70), mods='offen')
    g.I('buffer_store_dwordx4', v(20, 4), 'v0', s(72, 4), s(70), mods='offen offset:16')

def acc(dt, j):
    return ACC + (dt * 3 + j) * 4

def Sreg(kt, j):
    return S + (kt * 3 + j) * 4

def Qf(j, ks):
    return QF + (j * 6 + ks) * 4

def dma(g, vOff, srd, soff, mbase_sgpr, tag):
    for cb in range(3):
        g.I('s_add_u32', 'm0', s(mbase_sgpr), cb * 3968)
        mods = 'offen lds' if cb == 0 else f'offen offset:{cb*128} lds'
        g.I('buffer_load_dwordx4', v(vOff), s(srd, 4), s(soff), mods=mods, tag=tag)

def dma_piece(g, cb, vOff, srd, soff, mbase_sgpr, tag=None):
    if 'dt' in EXP and srd == sD:
        seg(g, 3)
        _dma_piece(g, cb, vOff, srd, soff, mbase_sgpr, tag)
        seg(g, 4)
    else:
        _dma_piece(g, cb, vOff, srd, soff, mbase_sgpr, tag)

def _dma_piece(g, cb, vOff, srd, soff, mbase_sgpr, tag=None):
    if 'plain' in EXP and srd == sD:
        g.I('buffer_load_dwordx4', v(100 + 4 * cb, 4), v(vOff), s(srd, 4), s(soff), mods='offen' if cb == 0 else f'offen offset:{cb*128}', tag=tag)
        return
    g.I('s_add_u32', 'm0', s(mbase_sgpr), cb * 3968)
    mods = 'offen lds' if cb == 0 else f'offen offset:{cb*128} lds'
    if srd in (sK, sV) and 'nont' not in EXP:
        mods = mods.replace(' lds', ' nt lds')
    g.I('buffer_load_dwordx4', v(vOff), s(srd, 4), s(soff), mods=mods, tag=tag)

def stag(g, w, fn, name):
    lb = g.newlabel(name + '_sg')
    g.I('s_cmp_eq_u32', s(sWv), w)
    g.I('s_cbranch_scc0', lb)
    fn()
    g.label(lb)

def dstep(g, nq, breg, half_off, first, NFB=6, PD=4, hooks=None):
    def rd(dt):
        if 'nord' in EXP and half_off == 512:
            return
        b = FB + (dt % NFB) * 4
        o = (dt >> 2) * 4096
        a = vA + (dt & 3)
        g.I('ds_read_b64_tr_b16', v(b, 2), v(a), mods=f'offset:{o}' if o else '', tag=('f', dt))
        g.I('ds_read_b64_tr_b16', v(b + 2, 2), v(a), mods=f'offset:{o+half_off}', tag=('f', dt))
    for dt in range(PD):
        rd(dt)
    for dt in range(12):
        if dt + PD < 12:
            rd(dt + PD)
        g.lg_wait(('f', dt))
        for j in range(nq):
            c = 0 if first else v(acc(dt, j), 4)
            if 'nomfma' in EXP and half_off == 512:
                continue
            g.I('v_mfma_f32_16x16x32_bf16', v(acc(dt, j), 4), v(FB + (dt % NFB) * 4, 4), v(breg[j], 4), c)
        if hooks and dt in hooks:
            hooks[dt]()

def set_addr4(g, base, slot):
    if slot == 0:
        g.I('v_mov_b32', v(vA), v(base))
    else:
        g.I('v_add_u32', v(vA), slot, v(base))
    for t in (1, 2, 3):
        g.I('v_xor_b32', v(vA + t), t * 32, v(vA))

def pack_swap(g, dst, a, b):
    g.I('v_cvt_pk_bf16_f32', v(dst), v(a), v(a + 1))
    g.I('v_cvt_pk_bf16_f32', v(dst + 1), v(a + 2), v(a + 3))
    g.I('v_cvt_pk_bf16_f32', v(dst + 2), v(b), v(b + 1))
    g.I('v_cvt_pk_bf16_f32', v(dst + 3), v(b + 2), v(b + 3))
    g.I('v_permlane32_swap_b32', v(dst), v(dst + 2))
    g.I('v_permlane32_swap_b32', v(dst + 1), v(dst + 3))
    g.I('v_permlane16_swap_b32', v(dst), v(dst + 2))
    g.I('v_permlane16_swap_b32', v(dst + 1), v(dst + 3))

def xlane(g, op, x, y):
    g.I('v_mov_b32', v(y), v(x))
    g.I('v_permlane32_swap_b32', v(x), v(y))
    g.I(op, v(x), v(x), v(y))
    g.I('v_mov_b32', v(y), v(x))
    g.I('v_permlane16_swap_b32', v(x), v(y))
    g.I(op, v(x), v(x), v(y))

def wave_body(g, nq, name):
    XD = 3
    NXB = 4
    def xbuf(u, j):
        return XB + ((u % NXB) * nq + j) * 4
    def xload(u, guard=True):
        lb = g.newlabel(name + '_nx')
        if guard:
            g.I('s_cmp_lt_u32', s(sXc), 20)
            g.I('s_cbranch_scc0', lb)
        for j in range(nq):
            if 'nox' not in EXP:
                g.I('buffer_load_dwordx4', v(xbuf(u, j), 4), v(vX), s(sX, 4), s(sXo + j), mods='offen', tag=('x', u))
            g.I('s_add_u32', s(sXo + j), s(sXo + j), 64)
        g.I('s_add_u32', s(sXc), s(sXc), 1)
        if guard:
            g.label(lb)
    def advance_slot():
        g.I('s_add_u32', s(sPs), s(sSl), s(sWb))
        g.I('s_add_u32', s(sSl), s(sSl), SLOT)
        g.I('s_cmp_eq_u32', s(sSl), NSLOT * SLOT)
        g.I('s_cselect_b32', s(sSl), 0, s(sSl))
    def select_generic():
        lkv, lv, ld = g.newlabel(name + '_kv'), g.newlabel(name + '_v'), g.newlabel(name + '_dn')
        g.I('s_cmp_lt_u32', s(sCnt), 20)
        g.I('s_cbranch_scc0', lkv)
        g.I('s_mov_b64', s(sD, 2), s(sW, 2))
        g.I('s_mov_b64', s(sD + 2, 2), s(sW + 2, 2))
        g.I('s_mov_b32', s(sDo), s(sOOB) if 'nowq' in EXP else s(sWo))
        g.I('v_mov_b32', v(vDc), v(vDW))
        g.I('s_add_u32', s(sWo), s(sWo), 32 * 12288)
        g.I('s_branch', ld)
        g.label(lkv)
        g.I('s_bitcmp1_b32', s(sCnt), 0)
        g.I('s_cbranch_scc1', lv)
        g.I('s_mov_b64', s(sD, 2), s(sK, 2))
        g.I('s_mov_b64', s(sD + 2, 2), s(sK + 2, 2))
        g.I('s_mov_b32', s(sDo), s(sKn))
        g.I('v_mov_b32', v(vDc), v(vDK))
        g.I('s_add_u32', s(sKn), s(sKn), SLOT)
        g.I('s_branch', ld)
        g.label(lv)
        g.I('s_mov_b64', s(sD, 2), s(sV, 2))
        g.I('s_mov_b64', s(sD + 2, 2), s(sV + 2, 2))
        g.I('s_mov_b32', s(sDo), s(sVn))
        g.I('v_mov_b32', v(vDc), v(vDV))
        g.I('s_add_u32', s(sVn), s(sVn), SLOT)
        g.label(ld)
        g.I('s_add_u32', s(sCnt), s(sCnt), 1)

    stamp(g, 0)
    stamp(g, 3, True)
    g.I('s_mov_b32', s(sXc), 0)
    for t in range(5):
        if t >= 2:
            xload(t - 2, False)
        g.I('s_add_u32', s(sT0), s(sWb), t * SLOT)
        dma(g, vDW, sW, sWo, sT0, 'd')
        g.I('s_add_u32', s(sWo), s(sWo), 32 * 12288)
    for r in range(12 * 3 * 4):
        if (r // 4) % 3 < nq:
            g.I('v_mov_b32', v(ACC + r), 0)
    if STAMP and 'seg' in EXP:
        for k in range(8):
            g.I('s_mov_b32', s(80 + k), 0)
        g.I('s_memtime', s(76, 2))
        g.I('s_waitcnt', 'lgkmcnt(0)')
    g.I('s_mov_b32', s(sCnt), 5)
    g.I('s_mov_b32', s(sSl), 0)
    g.I('s_add_u32', s(sPs), s(sWb), 5 * SLOT)
    g.I('s_mov_b32', s(sIt), 0)
    QL = f'{name}_qloop'
    g.pad(4)
    g.label(QL)
    for u in range(NXB):
        g.I('s_waitcnt', 'vmcnt(9)')
        seg(g, 0)
        g.I('s_barrier')
        seg(g, 1)
        select_generic()
        set_addr4(g, vWb, s(sSl))
        for j in range(nq):
            for r in range(4):
                g.I('ds_bpermute_b32', v(XP + 4 * j + r), v(vBP), v(xbuf(u, j) + r), tag='bp')
        if 'nodma' in EXP:
            hooks = {1: lambda: xload(u + XD)}
            dstep(g, nq, [XP + 4 * j for j in range(nq)], 512, False, hooks=hooks)
            advance_slot()
            continue
        hooks = {1: lambda: xload(u + XD),
                 4: lambda: dma_piece(g, 0, vDc, sD, sDo, sPs),
                 6: lambda: dma_piece(g, 1, vDc, sD, sDo, sPs),
                 8: lambda: dma_piece(g, 2, vDc, sD, sDo, sPs)}
        dstep(g, nq, [XP + 4 * j for j in range(nq)], 512, False, hooks=hooks)
        seg(g, 3)
        advance_slot()
    g.I('s_add_u32', s(sIt), s(sIt), 1)
    g.I('s_cmp_lt_u32', s(sIt), 5)
    g.I('s_cbranch_scc1', QL)
    stamp(g, 1)
    g.I('v_lshlrev_b32', v(vQ3), 4, 'v6')
    g.I('v_add_u32', v(vQ3), Q3OFF, v(vQ3))
    for j in range(nq):
        for ks in range(6):
            if j < 2:
                pack_swap(g, Qf(j, ks), acc(2 * ks, j), acc(2 * ks + 1, j))
            else:
                d = FB + (ks % 6) * 4
                pack_swap(g, d, acc(2 * ks, j), acc(2 * ks + 1, j))
                g.I('ds_write_b128', v(vQ3), v(d, 4), mods=f'offset:{ks*1024}' if ks else '', tag='q3w')
    for r in range(12 * 3 * 4):
        if (r // 4) % 3 < nq:
            g.I('v_mov_b32', v(ACC + r), 0)
    for j in range(nq):
        g.I('v_mov_b32', v(vM + j), 0xf149f2ca)
        g.I('v_mov_b32', v(vL + j), 0)
    g.lg_wait_all()
    g.I('s_mov_b32', s(sIt), 0)

    LOOP, RARE, BACK = f'{name}_loop', f'{name}_rare', f'{name}_back'
    g.pad(4)
    g.label(LOOP)
    seg(g, 6, 'aseg')
    g.I('s_waitcnt', 'vmcnt(12)')
    seg(g, 0, 'aseg')
    g.I('s_barrier')
    seg(g, 1, 'aseg')
    g.I('s_cmp_lt_u32', s(sVn), s(sVe))
    g.I('s_cselect_b32', s(sT1), s(sVn), s(sOOB))
    g.I('s_add_u32', s(sVn), s(sVn), SLOT)
    g.I('v_add_u32', v(vA), s(sSl), v(vKb))
    g.I('v_xor_b32', v(vA + 1), 64, v(vA))
    gsz = 12 if nq == 3 else 8
    ngb = 2 if nq == 3 else 3
    def kread(ks):
        b = FB + (ks % ngb) * gsz
        a = vA + (ks & 1)
        o = (ks >> 1) * 4096
        g.I('ds_read_b128', v(b, 4), v(a), mods=f'offset:{o}' if o else '', tag=('k', ks))
        g.I('ds_read_b128', v(b + 4, 4), v(a), mods=f'offset:{o+2048}', tag=('k', ks))
        if nq == 3:
            g.I('ds_read_b128', v(b + 8, 4), v(vQ3), mods=f'offset:{ks*1024}' if ks else '', tag=('k', ks))
    for ks in range(ngb):
        kread(ks)
    for ks in range(6):
        g.lg_wait(('k', ks))
        b = FB + (ks % ngb) * gsz
        for kt in range(2):
            for j in range(nq):
                q = Qf(j, ks) if j < 2 else b + 8
                c = 0 if ks == 0 else v(Sreg(kt, j), 4)
                g.I('v_mfma_f32_16x16x32_bf16', v(Sreg(kt, j), 4), v(b + 4 * kt, 4), v(q, 4), c)
        if ks + ngb < 6:
            kread(ks + ngb)
        if ks in (0, 2, 4):
            dma_piece(g, ks // 2, vDV, sV, sT1, sPs)
    advance_slot()
    seg(g, 2, 'aseg')
    T = FB
    for j in range(nq):
        a, b = Sreg(0, j), Sreg(1, j)
        g.I('v_max3_f32', v(T + j), v(a), v(a + 1), v(a + 2))
        g.I('v_max3_f32', v(T + j), v(T + j), v(a + 3), v(b))
        g.I('v_max3_f32', v(T + j), v(T + j), v(b + 1), v(b + 2))
        g.I('v_max_f32', v(T + j), v(T + j), v(b + 3))
        g.I('v_fma_f32', v(T + 3 + j), v(T + j), s(sC), f'-{v(vM + j)}')
    if nq == 3:
        g.I('v_max3_f32', v(T + 3), v(T + 3), v(T + 4), v(T + 5))
    else:
        g.I('v_max_f32', v(T + 3), v(T + 3), v(T + 4))
    g.I('v_cmp_lt_f32', 'vcc', s(sT), v(T + 3))
    g.I('s_cbranch_vccnz', RARE)
    g.label(BACK)
    for j in range(nq):
        rs = [Sreg(0, j) + i for i in range(4)] + [Sreg(1, j) + i for i in range(4)]
        for r in rs:
            g.I('v_fma_f32', v(r), v(r), s(sC), f'-{v(vM + j)}')
        for r in rs:
            g.I('v_exp_f32', v(r), v(r))
        t0 = T + 8
        g.I('v_add_f32', v(t0), v(rs[0]), v(rs[1]))
        g.I('v_add_f32', v(t0 + 1), v(rs[2]), v(rs[3]))
        g.I('v_add_f32', v(t0 + 2), v(rs[4]), v(rs[5]))
        g.I('v_add_f32', v(t0 + 3), v(rs[6]), v(rs[7]))
        g.I('v_add_f32', v(t0), v(t0), v(t0 + 1))
        g.I('v_add_f32', v(t0 + 2), v(t0 + 2), v(t0 + 3))
        g.I('v_add_f32', v(vL + j), v(vL + j), v(t0))
        g.I('v_add_f32', v(vL + j), v(vL + j), v(t0 + 2))
        g.I('v_cvt_pk_bf16_f32', v(rs[0]), v(rs[0]), v(rs[1]))
        g.I('v_cvt_pk_bf16_f32', v(rs[1]), v(rs[2]), v(rs[3]))
        g.I('v_cvt_pk_bf16_f32', v(rs[2]), v(rs[4]), v(rs[5]))
        g.I('v_cvt_pk_bf16_f32', v(rs[3]), v(rs[6]), v(rs[7]))
    seg(g, 3, 'aseg')
    g.I('s_waitcnt', 'vmcnt(12)')
    g.I('s_barrier')
    seg(g, 4, 'aseg')
    g.I('s_cmp_lt_u32', s(sKn), s(sKe))
    g.I('s_cselect_b32', s(sT1), s(sKn), s(sOOB))
    g.I('s_add_u32', s(sKn), s(sKn), SLOT)
    set_addr4(g, vVb, s(sSl))
    hooks = {1: lambda: dma_piece(g, 0, vDK, sK, sT1, sPs),
             4: lambda: dma_piece(g, 1, vDK, sK, sT1, sPs),
             7: lambda: dma_piece(g, 2, vDK, sK, sT1, sPs)}
    dstep(g, nq, [Sreg(0, j) for j in range(nq)], 2048, False, hooks=hooks)
    seg(g, 5, 'aseg')
    advance_slot()
    g.I('s_add_u32', s(sIt), s(sIt), 1)
    g.I('s_cmp_lt_u32', s(sIt), 16)
    g.I('s_cbranch_scc1', LOOP)
    vO = vA
    g.I('v_mbcnt_lo_u32_b32', v(vO + 1), -1, 0)
    g.I('v_mbcnt_hi_u32_b32', v(vO + 1), -1, v(vO + 1))
    g.I('v_and_b32', v(vO), 15, v(vO + 1))
    g.I('v_add_u32', v(vO), s(sQ0), v(vO))
    g.I('v_lshlrev_b32', v(vO), 7, v(vO))
    g.I('v_lshrrev_b32', v(vO + 1), 4, v(vO + 1))
    g.I('v_lshl_add_u32', v(vO), v(vO + 1), 4, v(vO))
    g.I('v_add_u32', v(vO + 1), 4096, v(vO))
    for j in range(nq):
        xlane(g, 'v_add_f32', vL + j, T)
        g.I('v_rcp_f32', v(vL + j), v(vL + j))
    for j in range(nq):
        for i in range(6):
            for dt in (2 * i, 2 * i + 1):
                for r in range(4):
                    g.I('v_mul_f32', v(acc(dt, j) + r), v(acc(dt, j) + r), v(vL + j))
            d = FB + ((j * 6 + i) % 6) * 4
            pack_swap(g, d, acc(2 * i, j), acc(2 * i + 1, j))
            o = (j & 1) * 2048 + (i & 1) * 64
            g.I('buffer_store_dwordx4', v(d, 4), v(vO + 1 if j == 2 else vO), s(sO, 4), s(sOo + (i >> 1)),
                mods=f'offen offset:{o}' if o else 'offen', tag='st')
    stamp(g, 2)
    stamp_store(g)
    g.I('s_endpgm')
    g.label(RARE)
    g.pad(2)
    for j in range(nq):
        xlane(g, 'v_max_f32', T + j, T + 8)
        g.I('v_mul_f32', v(T + j), s(sC), v(T + j))
        g.I('v_max_f32', v(T + j), v(T + j), v(vM + j))
        g.I('v_sub_f32', v(T + 8), v(vM + j), v(T + j))
        g.I('v_exp_f32', v(T + 8), v(T + 8))
        g.I('v_mov_b32', v(vM + j), v(T + j))
        g.I('v_mul_f32', v(vL + j), v(vL + j), v(T + 8))
        for dt in range(12):
            for r in range(4):
                g.I('v_mul_f32', v(acc(dt, j) + r), v(acc(dt, j) + r), v(T + 8))
    g.pad(2)
    g.I('s_branch', BACK)

def kernel1(g, name):
    import math
    g.raw(f'.globl {name}')
    g.raw('.p2align 8')
    g.raw(f'.type {name},@function')
    g.raw(f'{name}:')
    g.I('s_cmp_ge_u32', 's2', 1024)
    g.I('s_cbranch_scc1', f'{name}_exit')
    g.I('s_and_b32', s(sT0), 's2', 7)
    g.I('s_lshr_b32', s(sT1), 's2', 3)
    g.I('s_and_b32', s(sT2), s(sT1), 3)
    g.I('s_lshr_b32', s(sPair), s(sT1), 2)
    g.I('s_lshl_b32', s(sH), s(sT0), 2)
    g.I('s_add_u32', s(sH), s(sH), s(sT2))
    g.I('s_and_b32', s(sB), s(sPair), 15)
    g.I('s_lshr_b32', s(sT3), s(sPair), 4)
    g.I('s_mul_i32', s(sT3), s(sT3), 40)
    g.I('s_add_u32', s(sT0), 's0', s(sT3))
    g.I('s_addc_u32', s(sT1), 's1', 0)
    g.I('s_load_dwordx8', s(sP, 8), s(sT0, 2), 0)
    g.I('s_load_dwordx2', s(sWs, 2), 's[0:1]', 96)
    g.I('v_lshrrev_b32', 'v6', 6, 'v0')
    g.I('v_readfirstlane_b32', s(sWv), 'v6')
    g.I('v_and_b32', 'v7', 63, 'v0')
    g.I('s_lshl_b32', s(sWb), s(sWv), 10)
    g.I('s_lshl_b32', s(sQ0), s(sWv), 5)
    g.I('s_add_u32', s(sQ0), s(sQ0), 16)
    g.I('s_cmp_eq_u32', s(sWv), 0)
    g.I('s_cselect_b32', s(sQ0), 0, s(sQ0))
    g.I('v_and_b32', 'v8', 15, 'v7')
    g.I('v_lshrrev_b32', 'v9', 4, 'v7')
    g.I('v_bfe_u32', 'v10', 'v7', 2, 2)
    g.I('v_and_b32', 'v11', 3, 'v7')
    g.I('v_lshrrev_b32', 'v12', 1, 'v8')
    g.I('v_xor_b32', 'v12', 'v9', 'v12')
    g.I('v_lshlrev_b32', 'v12', 4, 'v12')
    g.I('v_lshl_add_u32', v(vKb), 'v8', 7, 'v12')
    g.I('v_lshrrev_b32', 'v12', 1, 'v10')
    g.I('v_and_b32', 'v13', 1, 'v9')
    g.I('v_lshl_or_b32', 'v12', 'v13', 1, 'v12')
    g.I('v_lshlrev_b32', 'v12', 1, 'v12')
    g.I('v_lshrrev_b32', 'v13', 1, 'v11')
    g.I('v_xor_b32', 'v12', 'v12', 'v13')
    g.I('v_lshlrev_b32', 'v12', 4, 'v12')
    g.I('v_and_b32', 'v13', 1, 'v11')
    g.I('v_lshl_add_u32', 'v12', 'v13', 3, 'v12')
    g.I('v_lshl_add_u32', 'v13', 'v9', 2, 'v10')
    g.I('v_lshl_add_u32', v(vVb), 'v13', 7, 'v12')
    g.I('v_lshl_add_u32', 'v13', 'v9', 3, 'v10')
    g.I('v_lshl_add_u32', v(vWb), 'v13', 7, 'v12')
    g.I('v_lshrrev_b32', 'v6', 2, 'v7')
    g.I('v_add_u32', 'v6', s(sQ0), 'v6')
    g.I('v_mul_u32_u24', 'v6', 1280, 'v6')
    g.I('v_lshl_add_u32', v(vX), 'v11', 4, 'v6')
    g.I('v_lshl_add_u32', 'v6', 'v8', 2, 'v9')
    g.I('v_lshlrev_b32', 'v16', 2, 'v6')
    g.I('v_lshrrev_b32', 'v12', 3, 'v7')
    g.I('s_lshl_b32', s(sT2), s(sWv), 3)
    g.I('v_add_u32', 'v12', s(sT2), 'v12')
    g.I('v_and_b32', 'v13', 7, 'v7')
    g.I('v_bfe_u32', 'v14', 'v12', 1, 3)
    g.I('v_xor_b32', 'v14', 'v14', 'v13')
    g.I('v_lshlrev_b32', 'v14', 4, 'v14')
    g.I('v_mul_u32_u24', 'v8', 384, 'v12')
    g.I('v_add_u32', v(vDK), 'v8', 'v14')
    g.I('v_bfe_u32', 'v14', 'v12', 1, 2)
    g.I('v_lshlrev_b32', 'v14', 1, 'v14')
    g.I('v_xor_b32', 'v14', 'v14', 'v13')
    g.I('v_lshlrev_b32', 'v14', 4, 'v14')
    g.I('v_add_u32', v(vDV), 'v8', 'v14')
    g.I('v_bfe_u32', 'v14', 'v12', 1, 1)
    g.I('v_bfe_u32', 'v9', 'v12', 3, 1)
    g.I('v_lshl_or_b32', 'v14', 'v9', 1, 'v14')
    g.I('v_lshlrev_b32', 'v14', 1, 'v14')
    g.I('v_xor_b32', 'v14', 'v14', 'v13')
    g.I('v_lshlrev_b32', 'v14', 4, 'v14')
    g.I('v_mul_u32_u24', 'v8', 12288, 'v12')
    g.I('v_add_u32', v(vDW), 'v8', 'v14')
    g.I('v_mov_b32', 'v6', 'v7')
    g.I('v_mov_b32', v(vBP), 'v16')
    g.I('s_mov_b32', s(sC), f32bits(math.log2(math.e) / math.sqrt(192.0)))
    g.I('s_mov_b32', s(sT), f32bits(8.0))
    g.I('s_mov_b32', s(sOOB), 0x40000000)
    g.I('s_mul_i32', s(sXo), s(sB), 184320)
    g.I('s_add_u32', s(sXo + 1), s(sXo), 20480)
    g.I('s_add_u32', s(sXo + 2), s(sXo), 40960)
    g.I('s_mul_i32', s(sWo), s(sH), 384)
    g.I('s_lshl_b32', s(sT2), s(sB), 5)
    g.I('s_add_u32', s(sT2), s(sT2), s(sH))
    g.I('s_mul_i32', s(sKn), s(sT2), 196608)
    g.I('s_add_u32', s(sKe), s(sKn), 196608)
    g.I('s_mov_b32', s(sVn), s(sKn))
    g.I('s_mov_b32', s(sVe), s(sKe))
    g.I('s_lshr_b32', s(sT3), s(sPair), 4)
    g.I('s_mul_i32', s(sOo), s(sT3), 96)
    g.I('s_mul_i32', s(sT3), s(sH), 3)
    g.I('s_add_u32', s(sOo), s(sOo), s(sT3))
    g.I('s_mul_i32', s(sOo), s(sOo), 2304)
    g.I('s_mul_i32', s(sT3), s(sB), 144)
    g.I('s_add_u32', s(sOo), s(sOo), s(sT3))
    g.I('s_lshl_b32', s(sOo), s(sOo), 7)
    g.I('s_add_u32', s(sOo + 1), s(sOo), 2304 * 128)
    g.I('s_add_u32', s(sOo + 2), s(sOo), 2 * 2304 * 128)
    g.I('s_waitcnt', 'lgkmcnt(0)')
    for srd, p, n in ((sX, sP, 2949120), (sK, sP + 2, 100663296), (sV, sP + 4, 100663296),
                      (sW, sP + 6, 7864320), (sO, sWs, 56623104)):
        g.I('s_mov_b32', s(srd), s(p))
        g.I('s_and_b32', s(srd + 1), s(p + 1), 0xffff)
        g.I('s_mov_b32', s(srd + 2), n)
        g.I('s_mov_b32', s(srd + 3), 0x00020000)
    g.I('s_cmp_eq_u32', s(sWv), 0)
    g.I('s_cbranch_scc0', f'{name}_light')
    save = (list(g.hist), list(g.vmq), list(g.lgq))
    wave_body_wrap(g, 3, name + '_h')
    g.label(f'{name}_light')
    g.hist, g.vmq, g.lgq = list(save[0]), [], []
    g.pad(2)
    wave_body_wrap(g, 2, name + '_l')
    g.label(f'{name}_exit')
    g.I('s_endpgm')

def wave_body_wrap(g, nq, name):
    wave_body(g, nq, name)
```
